```python
import torch

def _softmax(x, axis=-1):
    return torch.softmax(x, dim=axis)
def _gelu(x):
    return torch.nn.functional.gelu(x, approximate="tanh")
def _silu(x):
    return torch.nn.functional.silu(x)
def _sigmoid(x):
    return torch.sigmoid(x)
def _layernorm(x, axis=-1, eps=1e-5):
    m = x.mean(dim=axis, keepdim=True)
    v = x.var(dim=axis, keepdim=True, unbiased=False)
    return (x - m) / torch.sqrt(v + eps)
def _scatter_add(tgt, idx, src, axis=0):
    return tgt.clone().index_add_(axis, idx, src)
def _segment_sum(src, seg, n):
    out = torch.zeros((n,) + src.shape[1:], dtype=src.dtype)
    return out.index_add_(0, seg, src)
def _pad(x, pw):
    flat = tuple(v for pair in reversed(pw) for v in pair)
    return torch.nn.functional.pad(x, flat)

kernel_name = 'gated_mix__linear_attn_block__linear_kernel_hedgehog__prompt'

def setup_inputs():

    _w = (lambda a: (lambda t: t.to(torch.bfloat16) if t.is_floating_point() else t)(torch.as_tensor(a)))
    def _A_setup():
        B, S, D = 1, 2048, 576
        return {
            "x": _w((lambda *s: torch.randn(*s, dtype=torch.bfloat16) * 0.05)(B, S, D)),
            "wqkv": _w((lambda *s: torch.randn(*s, dtype=torch.bfloat16) * 1.6)(D, 3 * D)),
            "wo": _w((lambda *s: torch.randn(*s, dtype=torch.bfloat16) * 0.1)(D, D)),
        }
    _A_in = _A_setup()

    def _B_setup():
        B, S, D, H = 1, 2048, 576, 32
        Dh = D // H
        return {
            "x": _w((lambda *s: torch.randn(*s, dtype=torch.bfloat16) * 0.05)(B, S, D)),
            "wqkv": _w((lambda *s: torch.randn(*s, dtype=torch.bfloat16) * 1.6)(D, 3 * D)),
            "w_phi": _w((lambda *s: torch.randn(*s, dtype=torch.bfloat16) * 1.6)(H, Dh, Dh) * (Dh ** -0.5)),
            "wo": _w((lambda *s: torch.randn(*s, dtype=torch.bfloat16) * 0.05)(D, D)),
        }
    _B_in = _B_setup()

    return {
        "A_x": _A_in["x"],
        "A_wqkv": _A_in["wqkv"],
        "A_wo": _A_in["wo"],
        "B_x": _B_in["x"],
        "B_wqkv": _B_in["wqkv"],
        "B_w_phi": _B_in["w_phi"],
        "B_wo": _B_in["wo"],
        "gate_w": _w((lambda *s: torch.randn(*s, dtype=torch.bfloat16) * 0.05)(576) * 16.0),
    }

def reference(A_x, A_wqkv, A_wo, B_x, B_wqkv, B_w_phi, B_wo, gate_w):
    def _A_ref(x, wqkv, wo):
        B, S, D = x.shape
        H = 32; Dh = D // H
        qkv = (lambda x, *d: x.permute(*d))((x @ wqkv).reshape(B, S, 3, H, Dh), 2, 0, 3, 1, 4)
        q, k, v = qkv[0], qkv[1], qkv[2]
        phi = lambda t: torch.where(t > 0, t + 1, torch.exp(t)) + 1e-6
        pq, pk = phi(q), phi(k)
        kv = torch.einsum("bhsd,bhse->bhde", pk, v)
        z = torch.einsum("bhsd->bhd", pk)
        num = torch.einsum("bhqd,bhde->bhqe", pq, kv)
        den = torch.einsum("bhqd,bhd->bhq", pq, z)[..., None] + 1e-6
        o = num / den
        return (lambda x, *d: x.permute(*d))(o, 0, 2, 1, 3).reshape(B, S, D) @ wo

    def _B_ref(x, wqkv, w_phi, wo):
        B, S, D = x.shape
        H = 32; Dh = D // H
        qkv = (lambda x, *d: x.permute(*d))((x @ wqkv).reshape(B, S, 3, H, Dh), 2, 0, 3, 1, 4)
        q, k, v = qkv[0], qkv[1], qkv[2]
        pq = torch.einsum("bhsd,hdf->bhsf", q, w_phi)
        pk = torch.einsum("bhsd,hdf->bhsf", k, w_phi)
        phi_q = torch.concatenate([_softmax(pq, axis=-1), _softmax(-pq, axis=-1)], axis=-1)
        phi_k = torch.concatenate([_softmax(pk, axis=-1), _softmax(-pk, axis=-1)], axis=-1)
        kv = torch.einsum("bhsf,bhsd->bhfd", phi_k, v)
        z  = torch.einsum("bhsf->bhf", phi_k)
        num = torch.einsum("bhqf,bhfd->bhqd", phi_q, kv)
        den = torch.einsum("bhqf,bhf->bhq", phi_q, z)[..., None] + 1e-6
        o = num / den
        return (lambda x, *d: x.permute(*d))(o, 0, 2, 1, 3).reshape(B, S, D) @ wo

    x = A_x
    g = _sigmoid((x * gate_w).sum(-1, keepdims=True))
    a = _A_ref(x, A_wqkv, A_wo)
    b = _B_ref(x, B_wqkv, B_w_phi, B_wo)
    return g * a + (1 - g) * b
```

```python
import re

TRANS = ('v_exp_f32', 'v_log_f32', 'v_rcp_f32', 'v_rsq_f32', 'v_sqrt_f32', 'v_sin_f32', 'v_cos_f32',
         'v_exp_f16', 'v_log_f16', 'v_rcp_f16', 'v_rsq_f16', 'v_sqrt_f16', 'v_rcp_iflag_f32')

def expand(op):
    op = op.strip()
    if op.startswith('-'): op = op[1:]
    if op.startswith('|') and op.endswith('|'): op = op[1:-1]
    m = re.fullmatch(r'(neg|abs)\((.*)\)', op)
    if m: op = m.group(2)
    m = re.fullmatch(r'([vas])(\d+)', op)
    if m: return [(m.group(1), int(m.group(2)))]
    m = re.fullmatch(r'([vas])\[(\d+):(\d+)\]', op)
    if m: return [(m.group(1), i) for i in range(int(m.group(2)), int(m.group(3)) + 1)]
    if op in ('vcc', 'vcc_lo', 'vcc_hi'): return [('x', 'vcc')]
    if op in ('exec', 'exec_lo', 'exec_hi'): return [('x', 'exec')]
    if op == 'm0': return [('x', 'm0')]
    return []

class Inst:
    __slots__ = ('text', 'mn', 'ops', 'mods', 'rd', 'wr', 'cls', 'tag', 'wait_tag', 'srcC', 'D', 'passes')
    def __init__(self, text, tag=None):
        self.text = text; self.tag = tag; self.wait_tag = None
        t = text.split(';')[0].strip()
        parts = t.split(None, 1)
        self.mn = parts[0]
        rest = parts[1] if len(parts) > 1 else ''
        toks = [x.strip() for x in rest.split(',')] if rest else []
        ops = []; mods = []
        for i, x in enumerate(toks):
            sub = x.split()
            if not sub: continue
            ops.append(sub[0]); mods.extend(sub[1:])
        self.ops = ops; self.mods = mods
        self.srcC = []; self.D = []; self.passes = 0
        for m in mods:
            if m.startswith('offset:'):
                v = int(m[7:], 0)
                lim = 65535 if self.mn.startswith('ds_') else 4095
                assert 0 <= v <= lim, 'offset out of range: ' + text
        self.classify()

    def classify(self):
        mn = self.mn; ops = self.ops
        rd = []; wr = []
        E = expand
        if mn.startswith('v_mfma'):
            cls = 'mfma'
            wr = E(ops[0]); rd = E(ops[1]) + E(ops[2]) + E(ops[3])
            self.srcC = E(ops[3]); self.D = wr
            self.passes = 8 if '32x32' in mn else 4
        elif mn.startswith('v_'):
            cls = 'valu'
            if mn.startswith('v_cmp'):
                wr = E(ops[0]); rd = sum([E(o) for o in ops[1:]], [])
            elif mn.startswith(('v_add_co', 'v_sub_co', 'v_subrev_co', 'v_addc_co', 'v_subb_co')):
                wr = E(ops[0]) + E(ops[1]); rd = sum([E(o) for o in ops[2:]], [])
            elif mn.startswith(('v_permlane32_swap', 'v_permlane16_swap', 'v_swap_b32')):
                wr = E(ops[0]) + E(ops[1]); rd = list(wr)
            elif mn.startswith(('v_fmac', 'v_mac', 'v_dot2c', 'v_pk_fmac', 'v_dot4c')):
                wr = E(ops[0]); rd = sum([E(o) for o in ops], [])
            elif mn.startswith('v_div_fmas'):
                wr = E(ops[0]); rd = sum([E(o) for o in ops[1:]], []) + [('x', 'vcc')]
            elif mn == 'v_nop':
                pass
            else:
                wr = E(ops[0]); rd = sum([E(o) for o in ops[1:]], [])
            if 'dpp' in ''.join(self.mods) or any(m.startswith(('row_', 'quad_perm', 'wave_', 'row')) for m in self.mods):
                cls = 'valu_dpp'
        elif mn.startswith('buffer_load') or mn.startswith('global_load'):
            cls = 'vmem'
            if 'lds' in self.mods or mn.startswith('global_load_lds'):
                rd = sum([E(o) for o in ops], []) + [('x', 'm0')]
                cls = 'vmem_lds'
            else:
                wr = E(ops[0]); rd = sum([E(o) for o in ops[1:]], [])
                if 'd16' in mn: rd += wr
        elif mn.startswith('buffer_store') or mn.startswith('global_store') or mn.startswith('buffer_atomic') or mn.startswith('global_atomic'):
            cls = 'vmem_st'
            rd = sum([E(o) for o in ops], [])
        elif mn.startswith('ds_'):
            cls = 'ds'
            if mn.startswith(('ds_write', 'ds_add', 'ds_max', 'ds_min', 'ds_or', 'ds_and')) and 'rtn' not in mn:
                rd = sum([E(o) for o in ops], [])
            else:
                wr = E(ops[0]); rd = sum([E(o) for o in ops[1:]], [])
                if 'd16' in mn: rd += wr
        elif mn.startswith('s_load') or mn.startswith('s_buffer_load'):
            cls = 'smem'
            wr = E(ops[0]); rd = sum([E(o) for o in ops[1:]], [])
        elif mn in ('s_nop', 's_waitcnt', 's_barrier', 's_endpgm', 's_setprio', 's_sleep', 's_branch') or mn.startswith('s_cbranch'):
            cls = 'sctl'
        elif mn.startswith('s_'):
            cls = 'salu'
            if mn.startswith(('s_cmp', 's_bitcmp')):
                rd = sum([E(o) for o in ops], [])
            else:
                wr = E(ops[0]); rd = sum([E(o) for o in ops[1:]], [])
                if 'saveexec' in mn: wr += [('x', 'exec')]; rd += [('x', 'exec')]
        else:
            raise ValueError('unknown instruction ' + self.text)
        self.cls = cls; self.rd = rd; self.wr = wr

def is_valu(i): return i.cls in ('valu', 'valu_dpp')

class Kernel:
    def __init__(self, name):
        self.name = name
        self.items = []
        self.stats = {}

    def __call__(self, text, tag=None):
        for line in text.strip().split('\n'):
            line = line.strip()
            if not line or line.startswith(';'): continue
            if getattr(self, 'store_mod', '') and line.startswith('buffer_store'): line = line + ' ' + self.store_mod
            self.items.append(Inst(line, tag))
    def label(self, name): self.items.append(('label', name))
    def raw(self, text): self.items.append(('raw', text))
    def comment(self, text): self.items.append(('raw', '  ; ' + text))
    def wait_tag(self, *tags):
        i = Inst('s_waitcnt vmcnt(0)'); i.wait_tag = tags; self.items.append(i)

    def finalize(self):
        out = []
        vmq = []
        lgq = []
        hist = []
        def push_hist(inst, states=1):
            for h in hist: h[1] += states
            if inst is not None: hist.append([inst, 0])
            while hist and hist[0][1] > 24: hist.pop(0)
        def emit_text(s): out.append(s)
        def do_wait(vm=None, lg=None):
            s = 's_waitcnt'
            if vm is not None: s += ' vmcnt(%d)' % min(vm, 63)
            if lg is not None: s += ' lgkmcnt(%d)' % min(lg, 15)
            emit_text('  ' + s)
            if vm is not None:
                del vmq[:len(vmq) - vm]
            if lg is not None:
                del lgq[:len(lgq) - lg]
            push_hist(None)
        for it in self.items:
            if isinstance(it, tuple):
                if it[0] == 'label':
                    emit_text(it[1] + ':')
                    if vmq or lgq: do_wait(0 if vmq else None, 0 if lgq else None)
                    emit_text('  s_nop 15'); emit_text('  s_nop 7')
                    hist.clear()
                else:
                    emit_text(it[1])
                continue
            i = it
            if i.wait_tag is not None:
                idx = -1
                for n, e in enumerate(vmq):
                    if e['tag'] in i.wait_tag: idx = n
                if idx >= 0: do_wait(vm=len(vmq) - idx - 1)
                continue
            if i.mn == 's_waitcnt':
                m = re.search(r'vmcnt\((\d+)\)', i.text); v = int(m.group(1)) if m else None
                m = re.search(r'lgkmcnt\((\d+)\)', i.text); l = int(m.group(1)) if m else None
                if v is not None and len(vmq) > v: del vmq[:len(vmq) - v]
                if l is not None and len(lgq) > l: del lgq[:len(lgq) - l]
                emit_text('  ' + i.text); push_hist(i); continue
            regs = set(i.rd) | set(i.wr)
            need_vm = None; need_lg = None
            for n, e in enumerate(vmq):
                if e['dst'] & regs: need_vm = len(vmq) - n - 1
            for n, e in enumerate(lgq):
                if e['dst'] & regs:
                    need_lg = len(lgq) - n - 1
                    if e['smem'] or any(x['smem'] for x in lgq): need_lg = 0
            if need_vm is not None or need_lg is not None:
                do_wait(need_vm, need_lg)
            if i.cls == 'ds' and len(lgq) >= 15: do_wait(None, 13)
            if i.cls in ('vmem', 'vmem_lds', 'vmem_st') and len(vmq) >= 62: do_wait(60, None)
            need = 0
            rdset = set(i.rd); wrset = set(i.wr)
            for p, dist in hist:
                req = 0
                pw = set(p.wr)
                if p.cls == 'mfma':
                    big = 12 if p.passes == 8 else 8
                    if i.cls == 'mfma':
                        c = set(i.srcC)
                        if c & pw:
                            if i.srcC == p.D and i.passes == p.passes: pass
                            else: req = max(req, 10 if p.passes == 8 else 6)
                        ab = set(expand(i.ops[1]) + expand(i.ops[2]))
                        if ab & pw: req = max(req, big)
                        if set(i.D) & pw and not (i.srcC == p.D): req = max(req, big)
                    else:
                        if (rdset | wrset) & pw: req = max(req, big)
                    if is_valu(i) and wrset & set(p.srcC): req = max(req, 7 if p.passes == 8 else 3)
                elif is_valu(p):
                    vw = {r for r in pw if r[0] in 'va'}
                    sw = {r for r in pw if r[0] == 's' or r == ('x', 'vcc')}
                    if i.cls == 'mfma' and rdset & vw: req = max(req, 2)
                    if i.mn.startswith('v_permlane') and rdset & vw: req = max(req, 2)
                    if i.mn.startswith(('v_readfirstlane', 'v_readlane')) and rdset & vw: req = max(req, 1)
                    if i.cls == 'valu_dpp' and rdset & vw: req = max(req, 2)
                    if p.mn.startswith(TRANS) and is_valu(i) and not i.mn.startswith(TRANS) and rdset & vw: req = max(req, 1)
                    if p.mn.startswith('v_dot') and (rdset | wrset) & vw and not (i.mn == p.mn): req = max(req, 3)
                    if sw:
                        if i.cls in ('vmem', 'vmem_lds', 'vmem_st') and rdset & sw: req = max(req, 5)
                        if is_valu(i) and rdset & sw: req = max(req, 4 if i.mn.startswith('v_div_fmas') else 2)
                        if i.mn.startswith(('v_readlane', 'v_writelane')) and rdset & sw: req = max(req, 4)
                elif p.cls == 'salu':
                    if ('x', 'm0') in pw and i.cls == 'vmem_lds': req = max(req, 1)
                elif p.cls == 'vmem_st':
                    if any(x in p.mn for x in ('x3', 'x4')) and i.cls != 'sctl':
                        dat = set(expand(p.ops[0])) if p.mn.startswith('buffer') else set(expand(p.ops[1]))
                        if wrset & dat: req = max(req, 2 if is_valu(i) else 1)
                if req > dist: need = max(need, req - dist)
            while need > 0:
                n = min(need, 16)
                emit_text('  s_nop %d' % (n - 1)); push_hist(None, n); need -= n
            emit_text('  ' + i.text + (('  ; [' + str(i.tag) + ']') if i.tag else ''))
            push_hist(i)
            if i.cls in ('vmem', 'vmem_lds', 'vmem_st'):
                vmq.append(dict(dst=set(i.wr), tag=i.tag))
                assert len(vmq) <= 63, 'vmcnt overflow'
            elif i.cls == 'ds':
                lgq.append(dict(dst=set(i.wr), smem=False))
            elif i.cls == 'smem':
                lgq.append(dict(dst=set(i.wr), smem=True))
            self.stats[i.cls] = self.stats.get(i.cls, 0) + 1
        return '\n'.join(out) + '\n'

HEADER = '''.amdgcn_target "amdgcn-amd-amdhsa--gfx950"
.text
'''
def kernel_text(k, vgprs=256, sgprs=102, accum=256):
    body = k.finalize()
    s = '.globl %s\n.p2align 8\n.type %s,@function\n%s:\n' % (k.name, k.name, k.name) + body
    return s
def descriptor(name, vgprs=256, sgprs=102, accum=256):
    return '''.section .rodata,"a"
.p2align 6
.amdhsa_kernel %s
  .amdhsa_next_free_vgpr %d
  .amdhsa_next_free_sgpr %d
  .amdhsa_accum_offset %d
  .amdhsa_group_segment_fixed_size 0
  .amdhsa_kernarg_size 88
  .amdhsa_user_sgpr_count 2
  .amdhsa_user_sgpr_kernarg_segment_ptr 1
  .amdhsa_system_sgpr_workgroup_id_x 1
.end_amdhsa_kernel
''' % (name, vgprs, sgprs, accum)
```

```python
from asmgen import *

def file_text(kernels, launches, header_comment=''):
    s = header_comment
    for (name, grid, block, lds) in launches:
        s += '; @launch kernel=%s grid=(%d,1,1) block=(%d,1,1) lds=%d\n' % (name, grid, block, lds)
    s += HEADER
    for (k, vg, sg) in kernels:
        s += kernel_text(k)
    for (k, vg, sg) in kernels:
        ag = getattr(k, 'agprs', 0)
        s += descriptor(k.name, ((vg + 3) // 4) * 4 + ag if ag else vg, sg, ((vg + 3) // 4) * 4)
    return s

def srd(k, dst, base_lo, base_hi_reg, size):
    k('s_mov_b32 s%d, %s' % (dst, base_lo))
    k('s_and_b32 s%d, %s, 0xffff' % (dst + 1, base_hi_reg))
    k('s_mov_b32 s%d, 0x%x' % (dst + 2, size))
    k('s_mov_b32 s%d, 0x20000' % (dst + 3))
```

```python
from common import *
from layout import *

SLOT = 45056
XOFF = 28672
def r4(b): return 'v[%d:%d]' % (b, b + 3)
def r2(b): return 'v[%d:%d]' % (b, b + 1)
def r16(b): return 'v[%d:%d]' % (b, b + 15)

ACC = 0
AF = 112
BF = 168
VTR = 176
VXB = 179
VDM = 185
VLANE = 192
VT = 193

def acc(T): return ACC + 16 * T
def af(buf, T): return AF + 28 * buf + 4 * T
def bf_(buf): return BF + 4 * buf

def prologue(k):
    k('s_cmp_ge_u32 s2, 256')
    k('s_cbranch_scc1 k1_end')
    k('s_load_dwordx2 s[6:7], s[0:1], 0')
    k('s_load_dwordx2 s[32:33], s[0:1], 8')
    k('s_load_dwordx2 s[34:35], s[0:1], 32')
    k('s_load_dwordx2 s[36:37], s[0:1], 80')
    k('v_lshrrev_b32 v%d, 6, v0' % VT)
    k('v_and_b32 v%d, 63, v0' % VLANE)
    k('v_readfirstlane_b32 s24, v%d' % VT)
    k('s_lshr_b32 s27, s2, 4')
    k('s_and_b32 s28, s2, 15')
    k('s_lshr_b32 s29, s28, 3')
    k('s_and_b32 s30, s28, 7')
    k('s_and_b32 s25, s24, 3')
    k('s_lshr_b32 s26, s24, 2')
    k('s_waitcnt lgkmcnt(0)')
    k('s_cmp_eq_u32 s29, 0')
    k('s_cselect_b32 s4, s32, s34')
    k('s_cselect_b32 s5, s33, s35')
    srd(k, 8, 's4', 's5', 576 * 3456)
    srd(k, 12, 's6', 's7', 2048 * 1152)
    srd(k, 16, 's36', 's37', 0x10000000)
    L = VLANE; t = VT
    k('v_lshrrev_b32 v%d, 5, v%d' % (t, L))
    k('v_lshrrev_b32 v%d, 4, v%d' % (t + 1, L)); k('v_and_b32 v%d, 1, v%d' % (t + 1, t + 1))
    k('v_and_b32 v%d, 15, v%d' % (t + 2, L))
    k('v_lshrrev_b32 v%d, 2, v%d' % (t + 3, t + 2))
    k('v_and_b32 v%d, 3, v%d' % (t + 4, t + 2))
    k('v_lshl_add_u32 v%d, v%d, 3, v%d' % (t + 5, t, t + 3))
    k('v_mul_u32_u24 v%d, 448, v%d' % (t + 5, t + 5))
    k('v_lshlrev_b32 v%d, 5, v%d' % (t + 6, t + 1))
    k('v_lshl_add_u32 v%d, v%d, 3, v%d' % (t + 6, t + 4, t + 6))
    k('v_add_u32 v%d, v%d, v%d' % (VTR, t + 5, t + 6))
    k('v_add_u32 v%d, %d, v%d' % (VTR + 1, SLOT, VTR))
    k('v_add_u32 v%d, %d, v%d' % (VTR + 2, 2 * SLOT, VTR))

def role_prologue(k, s):
    L = VLANE; t = VT
    k('v_and_b32 v%d, 31, v%d' % (t, L))
    k('v_lshrrev_b32 v%d, 5, v%d' % (t + 1, L))
    k('v_bfe_u32 v%d, v%d, 1, 3' % (t + 2, L))
    k('s_lshl_b32 s31, s25, 12')
    k('s_add_u32 s31, s31, %d' % XOFF)
    k('v_lshlrev_b32 v%d, 7, v%d' % (t + 3, t))
    k('v_add_u32 v%d, s31, v%d' % (t + 3, t + 3))
    for ti in range(2):
        tk = 2 * s + ti
        k('v_add_u32 v%d, %d, v%d' % (t + 4, 2 * tk, t + 1))
        k('v_xor_b32 v%d, v%d, v%d' % (t + 4, t + 4, t + 2))
        k('v_lshl_add_u32 v%d, v%d, 4, v%d' % (VXB + 3 * ti, t + 4, t + 3))
        k('v_add_u32 v%d, %d, v%d' % (VXB + 3 * ti + 1, SLOT, VXB + 3 * ti))
        k('v_add_u32 v%d, %d, v%d' % (VXB + 3 * ti + 2, 2 * SLOT, VXB + 3 * ti))
    if s == 0:
        k('s_mul_i32 s38, s30, 144')
        for jj in range(7):
            k('v_add_u32 v%d, %d, v%d' % (t, jj * 64, L))
            k('v_mul_u32_u24 v%d, 2341, v%d' % (t + 1, t))
            k('v_lshrrev_b32 v%d, 16, v%d' % (t + 1, t + 1))
            k('v_mul_u32_u24 v%d, 28, v%d' % (t + 2, t + 1))
            k('v_sub_u32 v%d, v%d, v%d' % (t + 2, t, t + 2))
            k('v_min_u32 v%d, 26, v%d' % (t + 2, t + 2))
            k('v_mul_u32_u24 v%d, 29, v%d' % (t + 3, t + 2))
            k('v_lshrrev_b32 v%d, 8, v%d' % (t + 3, t + 3))
            k('v_mul_u32_u24 v%d, 9, v%d' % (t + 4, t + 3))
            k('v_sub_u32 v%d, v%d, v%d' % (t + 4, t + 2, t + 4))
            k('v_mul_u32_u24 v%d, 3456, v%d' % (t + 5, t + 1))
            k('v_mul_u32_u24 v%d, 1152, v%d' % (t + 6, t + 3))
            k('v_add3_u32 v%d, v%d, v%d, s38' % (t + 5, t + 5, t + 6))
            k('v_lshl_add_u32 v%d, v%d, 4, v%d' % (VDM + jj, t + 4, t + 5))
        k('s_mul_i32 s39, s25, %d' % (16 * 3456))
    else:
        k('v_lshrrev_b32 v%d, 3, v%d' % (t, L))
        k('v_mul_u32_u24 v%d, 1152, v%d' % (t, t))
        k('v_and_b32 v%d, 7, v%d' % (t + 1, L))
        k('v_lshrrev_b32 v%d, 4, v%d' % (t + 2, L))
        k('v_xor_b32 v%d, v%d, v%d' % (t + 3, t + 1, t + 2))
        k('v_lshl_add_u32 v%d, v%d, 4, v%d' % (VDM, t + 3, t))
        k('v_xor_b32 v%d, 4, v%d' % (t + 3, t + 3))
        k('v_lshl_add_u32 v%d, v%d, 4, v%d' % (VDM + 1, t + 3, t))
        k('s_lshl_b32 s39, s27, 7')
        k('s_lshl_b32 s40, s25, 5')
        k('s_add_u32 s39, s39, s40')
        k('s_mul_i32 s39, s39, 1152')

def issue_dma(k, s, c):
    slot = c % 3
    if s == 0:
        k('s_add_u32 s40, s39, %d' % (c * 64 * 3456))
        for jj in range(7):
            k('s_mul_i32 s41, s25, 7168')
            k('s_add_u32 m0, s41, %d' % (slot * SLOT + jj * 1024))
            k('buffer_load_dwordx4 v%d, s[8:11], s40 offen lds' % (VDM + jj), tag='dma%d' % c)
    else:
        for i in range(4):
            k('s_add_u32 s40, s39, %d' % (i * 8 * 1152 + c * 128))
            k('s_lshl_b32 s41, s25, 12')
            k('s_add_u32 m0, s41, %d' % (slot * SLOT + XOFF + i * 1024))
            k('buffer_load_dwordx4 v%d, s[12:15], s40 offen lds' % (VDM + (i & 1)), tag='dma%d' % c)

def issue_reads(k, s, c, ti, buf, T):
    slot = c % 3; tk = 2 * s + ti
    if T == 0:
        k('ds_read_b128 %s, v%d' % (r4(bf_(buf)), VXB + 3 * ti + slot))
    for q in range(2):
        k('ds_read_b64_tr_b16 %s, v%d offset:%d' % (r2(af(buf, T) + 2 * q), VTR + slot, (16 * tk + 4 * q) * 448 + 64 * T))

def main_loop(k, s, after_dma=None):
    for c in range(3): issue_dma(k, s, c)
    if after_dma: after_dma()
    k.wait_tag('dma0')
    k('s_barrier')
    for T in range(7): issue_reads(k, s, 0, 0, 0, T)
    step = 0
    for c in range(9):
        for ti in range(2):
            buf = step % 2
            if ti == 1:
                k('s_waitcnt lgkmcnt(0)')
                if c + 1 < 9: k.wait_tag('dma%d' % (c + 1))
                k('s_barrier')
                if c + 3 < 9: issue_dma(k, s, c + 3)
            for T in range(7):
                a = acc(T)
                first = (c == 0 and ti == 0)
                k('v_mfma_f32_32x32x16_bf16 %s, %s, %s, %s' % (r16(a), r4(af(buf, T)), r4(bf_(buf)), '0' if first else r16(a)))
                for T2 in (2 * T, 2 * T + 1):
                    if T2 > 6: continue
                    if ti == 0: issue_reads(k, s, c, 1, buf ^ 1, T2)
                    elif c + 1 < 9: issue_reads(k, s, c + 1, 0, buf ^ 1, T2)
            step += 1

def uset(s): return [9 * p + 4 * s + i for p in range(3) for i in range(5)]

def exchange(k, s):
    t = VT
    k('s_barrier')
    k('s_lshl_b32 s40, s25, 1')
    k('s_add_u32 s41, s40, %d' % (1 - s))
    k('s_mul_i32 s41, s41, 15360')
    k('s_add_u32 s40, s40, %d' % s)
    k('s_mul_i32 s40, s40, 15360')
    k('v_lshlrev_b32 v%d, 4, v%d' % (t, VLANE))
    k('v_add_u32 v%d, s41, v%d' % (t + 1, t))
    k('v_add_u32 v%d, s40, v%d' % (t + 2, t))
    for ui, U in enumerate(uset(1 - s)):
        k('ds_write_b128 v%d, %s offset:%d' % (t + 1, r4(acc(U // 4) + 4 * (U % 4)), ui * 1024))
    k('s_waitcnt lgkmcnt(0)')
    k('s_barrier')
    R = AF
    for ui, U in enumerate(uset(s)):
        k('ds_read_b128 %s, v%d offset:%d' % (r4(R + 4 * ui), t + 2, ui * 1024))
    for ui, U in enumerate(uset(s)):
        a = acc(U // 4) + 4 * (U % 4)
        for i in range(4):
            if s == 0: k('v_add_f32 v%d, v%d, v%d' % (a + i, a + i, R + 4 * ui + i))
            else: k('v_add_f32 v%d, v%d, v%d' % (a + i, R + 4 * ui + i, a + i))

def debug_dump(k, s):
    t = VT
    k('s_lshl_b32 s40, s2, 3')
    k('s_add_u32 s40, s40, s24')
    k('s_mul_i32 s40, s40, 15360')
    k('v_lshlrev_b32 v%d, 2, v%d' % (t, VLANE))
    for ui, U in enumerate(uset(s)):
        a = acc(U // 4) + 4 * (U % 4)
        k('s_add_u32 s41, s40, %d' % (ui * 1024))
        for i in range(4):
            k('buffer_store_dword v%d, v%d, s[16:19], s41 offen offset:%d' % (a + i, t, i * 256))

def gen_k1_debug():
    k = Kernel('k1_kernel')
    prologue(k)
    k('s_cmp_eq_u32 s26, 0')
    k('s_cbranch_scc0 k1_role1')
    for s in range(2):
        if s == 1: k.label('k1_role1')
        role_prologue(k, s)
        main_loop(k, s)
        exchange(k, s)
        debug_dump(k, s)
        k('s_endpgm')
    k.label('k1_end')
    k('s_endpgm')
    return k

if __name__ == '__main__':
    k = gen_k1_debug()
    open('k1_test.s', 'w').write(file_text([(k, 208, 48)], [('k1_kernel', 256, 512, 3 * SLOT)]))
    print(k.stats)
```

```python
from k1 import *

PK = 112
PHI = 142
TMP = 162
WPH = 208
PITCH = {0: 328, 1: 584}
VCOL = {0: 72, 1: 192}

def pk(ui, h): return PK + 2 * ui + h

def cvt_units(k, s):
    for ui, U in enumerate(uset(s)):
        a = acc(U // 4) + 4 * (U % 4)
        k('v_cvt_pk_bf16_f32 v%d, v%d, v%d' % (pk(ui, 0), a, a + 1))
        k('v_cvt_pk_bf16_f32 v%d, v%d, v%d' % (pk(ui, 1), a + 2, a + 3))

def phi_a_unit(k, src, dst):
    t = TMP
    for h in range(2):
        a0, a1, e0, e1 = t + 4 * h, t + 4 * h + 1, t + 4 * h + 2, t + 4 * h + 3
        k('v_lshlrev_b32 v%d, 16, v%d' % (a0, src + h))
        k('v_and_b32 v%d, 0xffff0000, v%d' % (a1, src + h))
        k('v_min_f32 v%d, 0, v%d' % (e0, a0)); k('v_min_f32 v%d, 0, v%d' % (e1, a1))
        k('v_mul_f32 v%d, 0x3fb8aa3b, v%d' % (e0, e0)); k('v_mul_f32 v%d, 0x3fb8aa3b, v%d' % (e1, e1))
        k('v_exp_f32 v%d, v%d' % (e0, e0)); k('v_exp_f32 v%d, v%d' % (e1, e1))
        k('v_max_f32 v%d, 0, v%d' % (a0, a0)); k('v_max_f32 v%d, 0, v%d' % (a1, a1))
        k('v_add_f32 v%d, v%d, v%d' % (a0, a0, e0)); k('v_add_f32 v%d, v%d, v%d' % (a1, a1, e1))
        k('v_cvt_pk_bf16_f32 v%d, v%d, v%d' % (e0, a0, a1))
        k('v_lshlrev_b32 v%d, 16, v%d' % (a0, e0))
        k('v_and_b32 v%d, 0xffff0000, v%d' % (a1, e0))
        k('v_add_f32 v%d, 0x358637bd, v%d' % (a0, a0)); k('v_add_f32 v%d, 0x358637bd, v%d' % (a1, a1))
        k('v_cvt_pk_bf16_f32 v%d, v%d, v%d' % (dst + h, a0, a1))

def row_addrs(k, br):
    t = TMP
    k('v_and_b32 v%d, 31, v%d' % (t, VLANE))
    k('v_lshrrev_b32 v%d, 5, v%d' % (t + 1, VLANE))
    k('s_lshl_b32 s40, s25, 5')
    k('v_add_u32 v%d, s40, v%d' % (t, t))
    k('v_mul_u32_u24 v%d, %d, v%d' % (t, PITCH[br], t))
    k('v_lshl_add_u32 v%d, v%d, 3, v%d' % (t + 28, t + 1, t))
    k('v_mul_u32_u24 v%d, 12, v%d' % (t + 1, t + 1))
    k('v_add_u32 v%d, v%d, v%d' % (t + 29, t + 1, t))

def write_v(k, s, br):
    t = TMP
    for ui, U in enumerate(uset(s)):
        if U // 9 != 2: continue
        u = U - 18
        for pp in range(2):
            F0 = 8 * u + 2 * pp; F1 = F0 + 4
            if F0 >= 72: continue
            h0 = F0 // 18; h1 = min(F1, 71) // 18
            col0 = VCOL[br] + F0 + 2 * h0
            k('ds_write_b32 v%d, v%d offset:%d' % ((t + 28) if h1 == h0 else (t + 29), pk(ui, pp), 2 * col0))

def store_phq_a(k, s):
    t = TMP
    k('s_lshl_b32 s40, s27, 2'); k('s_add_u32 s40, s40, s25')
    k('s_lshl_b32 s40, s40, 3'); k('s_add_u32 s40, s40, s30')
    k('s_mul_i32 s40, s40, 5120')
    k('s_add_u32 s40, s40, %d' % (PHQA_OFF + 2048 * s))
    k('v_lshlrev_b32 v%d, 4, v%d' % (t, VLANE))
    if s == 0: pairs = [(0, PHI), (1, PHI + 4)]
    else:
        k('v_mov_b32 v%d, v%d' % (t + 24, PHI + 8)); k('v_mov_b32 v%d, v%d' % (t + 25, PHI + 9))
        k('v_mov_b32 v%d, 0' % (t + 26)); k('v_mov_b32 v%d, 0' % (t + 27))
        pairs = [(2, PHI), (3, PHI + 4), (4, t + 24)]
    for (pi, reg) in pairs:
        k('buffer_store_dwordx4 %s, v%d, s[16:19], s40 offen offset:%d' % (r4(reg), t, (pi - 2 * s) * 1024))

def kv_stage(k, br):
    t = TMP; P = PITCH[br]
    L = VLANE
    k('v_lshrrev_b32 v%d, 5, v%d' % (t, L))
    k('v_lshrrev_b32 v%d, 4, v%d' % (t + 1, L)); k('v_and_b32 v%d, 1, v%d' % (t + 1, t + 1))
    k('v_and_b32 v%d, 15, v%d' % (t + 2, L))
    k('v_lshrrev_b32 v%d, 2, v%d' % (t + 3, t + 2))
    k('v_and_b32 v%d, 3, v%d' % (t + 4, t + 2))
    k('v_lshl_add_u32 v%d, v%d, 3, v%d' % (t + 5, t, t + 3))
    k('v_mul_u32_u24 v%d, %d, v%d' % (t + 5, P, t + 5))
    k('v_lshlrev_b32 v%d, 5, v%d' % (t + 6, t + 1))
    k('v_lshl_add_u32 v%d, v%d, 3, v%d' % (t + 6, t + 4, t + 6))
    k('v_add_u32 v%d, v%d, v%d' % (t + 5, t + 5, t + 6))
    k('s_lshl_b32 s42, s42, 1'); k('s_lshl_b32 s43, s43, 1')
    k('v_add_u32 v%d, s42, v%d' % (t + 6, t + 5))
    k('v_add_u32 v%d, s43, v%d' % (t + 7, t + 5))
    k('v_add_u32 v%d, %d, v%d' % (t + 8, 64 * P, t + 6))
    k('v_add_u32 v%d, %d, v%d' % (t + 9, 64 * P, t + 7))
    k('v_mov_b32 v%d, 0x3f803f80' % (t + 10))
    k('s_mov_b32 s44, 0x00440000'); k('s_mov_b32 s45, 0x00440000')
    A0 = 0; B0 = 32; D = 64
    for kk in range(8):
        va = (t + 6) if kk < 4 else (t + 8); vb = (t + 7) if kk < 4 else (t + 9)
        for q in range(2):
            k('ds_read_b64_tr_b16 %s, v%d offset:%d' % (r2(A0 + 4 * kk + 2 * q), va, (16 * (kk % 4) + 4 * q) * P))
            k('ds_read_b64_tr_b16 %s, v%d offset:%d' % (r2(B0 + 4 * kk + 2 * q), vb, (16 * (kk % 4) + 4 * q) * P))
    for kk in range(8):
        for i in range(4):
            k('v_cndmask_b32 v%d, v%d, v%d, s[44:45]' % (B0 + 4 * kk + i, B0 + 4 * kk + i, t + 10))
        k('v_mfma_f32_32x32x16_bf16 %s, %s, %s, %s' % (r16(D), r4(A0 + 4 * kk), r4(B0 + 4 * kk), '0' if kk == 0 else r16(D)))
    return D

def store_part(k, D):
    t = TMP
    k('s_mul_i32 s40, s27, 96'); k('s_add_u32 s40, s40, s46')
    k('s_mul_i32 s40, s40, 3072'); k('s_add_u32 s40, s40, %d' % PART_OFF)
    k('v_lshlrev_b32 v%d, 4, v%d' % (t, VLANE))
    for q in range(3):
        k('buffer_store_dwordx4 %s, v%d, s[16:19], s40 offen offset:%d' % (r4(D + 4 * q), t, q * 1024))

def epilogue_a(k, s):
    cvt_units(k, s)
    us = uset(s)
    for ui in range(10):
        phi_a_unit(k, pk(ui, 0), PHI + 2 * ui)
    store_phq_a(k, s)
    k('s_barrier')
    row_addrs(k, 0)
    for ui in range(5, 10):
        u = us[ui] - 9
        k('ds_write_b64 v%d, %s offset:%d' % (TMP + 28, r2(PHI + 2 * ui), 16 * u))
    write_v(k, s, 0)
    k('s_waitcnt lgkmcnt(0)')
    k('s_barrier')
    if s == 0:
        k('s_lshl_b32 s42, s25, 4')
        k('s_mul_i32 s43, s25, 20'); k('s_add_u32 s43, s43, 72')
        k('s_lshl_b32 s46, s30, 2'); k('s_add_u32 s46, s46, s25')
        D = kv_stage(k, 0)
        store_part(k, D)

def gen_k1_a_only():
    k = Kernel('k1_kernel')
    prologue(k)
    k('s_cmp_eq_u32 s29, 1')
    k('s_cbranch_scc1 k1_end')
    k('s_cmp_eq_u32 s26, 0')
    k('s_cbranch_scc0 k1_role1')
    for s in range(2):
        if s == 1: k.label('k1_role1')
        role_prologue(k, s)
        main_loop(k, s)
        exchange(k, s)
        epilogue_a(k, s)
        k('s_endpgm')
    k.label('k1_end')
    k('s_endpgm')
    return k

RAW = 208
WPK = 240

def wphi_loads(k, s):
    t = VT
    k('s_load_dwordx2 s[48:49], s[0:1], 40')
    k('v_and_b32 v%d, 31, v%d' % (t, VLANE))
    k('v_lshrrev_b32 v%d, 5, v%d' % (t + 1, VLANE))
    k('v_mov_b32 v%d, 0x7fff0000' % (t + 2))
    k('v_cmp_eq_u32 vcc, 20, v%d' % t)
    k('v_cndmask_b32 v%d, v%d, 17, vcc' % (t + 3, t + 2))
    k('v_cmp_ge_u32 vcc, 16, v%d' % t)
    k('v_cndmask_b32 v%d, v%d, v%d, vcc' % (t + 3, t + 3, t))
    k('v_cmp_ge_u32 vcc, 17, v%d' % (t + 3))
    k('v_lshlrev_b32 v%d, 1, v%d' % (t + 4, t + 3))
    k('v_cndmask_b32 v%d, v%d, v%d, vcc' % (t + 3, t + 3, t + 4))
    k('v_mul_u32_u24 v%d, 144, v%d' % (t + 4, t + 1))
    k('v_add_u32 v%d, v%d, v%d' % (t + 4, t + 4, t + 3))
    k('v_cmp_eq_u32 vcc, 1, v%d' % (t + 1))
    k('v_cndmask_b32 v%d, v%d, v%d, vcc' % (t + 5, t + 2, t + 3))
    k('v_cndmask_b32 v%d, v%d, v%d, vcc' % (t + 6, t + 3, t + 2))
    k('s_waitcnt lgkmcnt(0)')
    srd(k, 20, 's48', 's49', 32 * 648)
    k('s_lshl_b32 s47, s30, 2')
    for hi in range(2):
        hl = 2 * s + hi; o = (18 * hl) % 8
        k('s_add_u32 s48, s47, %d' % hl)
        k('s_mul_i32 s48, s48, 648')
        for kap in range(2):
            for j in range(8):
                c = 16 * kap + (j if j < 4 else 8 + j - 4) - o
                dst = RAW + (hi * 2 + kap) * 8 + j
                v0ok = 0 <= c < 18; v1ok = 0 <= c + 4 < 18
                if v0ok and v1ok: k('buffer_load_ushort v%d, v%d, s[20:23], s48 offen offset:%d' % (dst, t + 4, c * 36))
                elif v1ok: k('buffer_load_ushort v%d, v%d, s[20:23], s48 offen offset:%d' % (dst, t + 5, (c + 4) * 36))
                elif v0ok: k('buffer_load_ushort v%d, v%d, s[20:23], s48 offen offset:%d' % (dst, t + 6, c * 36))
                else: k('v_mov_b32 v%d, 0' % dst)

def wphi_pack(k):
    for f in range(4):
        for p in range(4):
            k('v_lshl_or_b32 v%d, v%d, 16, v%d' % (WPK + 4 * f + p, RAW + 8 * f + 2 * p + 1, RAW + 8 * f + 2 * p))

LOG2E = '0x3fb8aa3b'
def softmax_pm(k, D, outp, outm):
    t = TMP
    p = t
    c = t + 9
    for i in range(4): k('v_cvt_pk_bf16_f32 v%d, v%d, v%d' % (c + i, D + 2 * i, D + 2 * i + 1))
    k('v_cvt_pk_bf16_f32 v%d, v%d, v%d' % (c + 4, D + 8, D + 8))
    for i in range(4):
        k('v_lshlrev_b32 v%d, 16, v%d' % (p + 2 * i, c + i))
        k('v_and_b32 v%d, 0xffff0000, v%d' % (p + 2 * i + 1, c + i))
    k('v_lshlrev_b32 v%d, 16, v%d' % (p + 8, c + 4))
    mx, mn, t1, t2 = t + 14, t + 15, t + 16, t + 17
    k('v_max3_f32 v%d, v%d, v%d, v%d' % (mx, p, p + 1, p + 2)); k('v_min3_f32 v%d, v%d, v%d, v%d' % (mn, p, p + 1, p + 2))
    for a in (3, 5, 7):
        k('v_max3_f32 v%d, v%d, v%d, v%d' % (mx, mx, p + a, p + a + 1)); k('v_min3_f32 v%d, v%d, v%d, v%d' % (mn, mn, p + a, p + a + 1))
    k('v_mov_b32 v%d, v%d' % (t1, mx)); k('v_mov_b32 v%d, v%d' % (t2, mn))
    k('v_permlane32_swap_b32 v%d, v%d' % (mx, t1)); k('v_permlane32_swap_b32 v%d, v%d' % (mn, t2))
    k('v_max_f32 v%d, v%d, v%d' % (mx, mx, t1)); k('v_min_f32 v%d, v%d, v%d' % (mn, mn, t2))
    k('v_mul_f32 v%d, %s, v%d' % (mx, '0xbfb8aa3b', mx))
    k('v_mul_f32 v%d, %s, v%d' % (mn, LOG2E, mn))
    k('v_mov_b32 v%d, %s' % (t1, LOG2E)); k('v_mov_b32 v%d, 0xbfb8aa3b' % t2)
    ep, em = D, t + 18
    for i in range(9):
        k('v_fma_f32 v%d, v%d, v%d, v%d' % (ep + i, p + i, t1, mx))
        k('v_fma_f32 v%d, v%d, v%d, v%d' % (em + i, p + i, t2, mn))
    for i in range(9):
        k('v_exp_f32 v%d, v%d' % (ep + i, ep + i)); k('v_exp_f32 v%d, v%d' % (em + i, em + i))
    sp, sm = mx, mn
    k('v_add_f32 v%d, v%d, v%d' % (sp, ep, ep + 1)); k('v_add_f32 v%d, v%d, v%d' % (sm, em, em + 1))
    for i in range(2, 9):
        k('v_add_f32 v%d, v%d, v%d' % (sp, sp, ep + i)); k('v_add_f32 v%d, v%d, v%d' % (sm, sm, em + i))
    k('v_mov_b32 v%d, v%d' % (t1, sp)); k('v_mov_b32 v%d, v%d' % (t2, sm))
    k('v_permlane32_swap_b32 v%d, v%d' % (sp, t1)); k('v_permlane32_swap_b32 v%d, v%d' % (sm, t2))
    k('v_add_f32 v%d, v%d, v%d' % (sp, sp, t1)); k('v_add_f32 v%d, v%d, v%d' % (sm, sm, t2))
    k('v_rcp_f32 v%d, v%d' % (sp, sp)); k('v_rcp_f32 v%d, v%d' % (sm, sm))
    for i in range(9):
        k('v_mul_f32 v%d, v%d, v%d' % (ep + i, ep + i, sp)); k('v_mul_f32 v%d, v%d, v%d' % (em + i, em + i, sm))
    for (e, o) in ((ep, outp), (em, outm)):
        for i in range(4): k('v_cvt_pk_bf16_f32 v%d, v%d, v%d' % (o + i, e + 2 * i, e + 2 * i + 1))
        k('v_cvt_pk_bf16_f32 v%d, v%d, v%d' % (o + 4, e + 8, e + 8))

RES = 142
def epilogue_b(k, s):
    us = uset(s)
    cvt_units(k, s)
    wphi_pack(k)
    PD = 0
    KR = 16
    QR = 40
    BT = 52
    k('s_lshl_b32 s40, s27, 2'); k('s_add_u32 s40, s40, s25')
    k('s_lshl_b32 s40, s40, 5')
    k('s_lshl_b32 s41, s30, 2'); k('s_add_u32 s40, s40, s41')
    k('v_lshlrev_b32 v%d, 4, v%d' % (BT + 4, VLANE))
    k('v_lshlrev_b32 v%d, 2, v%d' % (BT + 5, VLANE))
    for hi in range(2):
        hl = 2 * s + hi
        for part in range(2):
            for kap in range(2):
                Ul = 2 * hl + 2 * kap
                ua = 9 * part + Ul
                ia = us.index(ua)
                if ua + 1 in us and (ua + 1) // 9 == part:
                    b = pk(ia, 0)
                else:
                    k('v_mov_b32 v%d, v%d' % (BT, pk(ia, 0))); k('v_mov_b32 v%d, v%d' % (BT + 1, pk(ia, 1)))
                    k('v_mov_b32 v%d, 0' % (BT + 2)); k('v_mov_b32 v%d, 0' % (BT + 3))
                    b = BT
                k('v_mfma_f32_32x32x16_bf16 %s, %s, %s, %s' % (r16(PD), r4(WPK + 4 * (2 * hi + kap)), r4(b), '0' if kap == 0 else r16(PD)))
            if part == 0:
                softmax_pm(k, PD, QR, QR + 6)
                k('s_add_u32 s41, s40, %d' % hl)
                k('s_lshl_b32 s42, s41, 11'); k('s_add_u32 s42, s42, %d' % PHQB_OFF)
                k('s_lshl_b32 s43, s41, 8'); k('s_add_u32 s43, s43, %d' % PHQB2_OFF)
                k('buffer_store_dwordx4 %s, v%d, s[16:19], s42 offen' % (r4(QR), BT + 4))
                k('buffer_store_dwordx4 %s, v%d, s[16:19], s42 offen offset:1024' % (r4(QR + 6), BT + 4))
                k('v_and_b32 v%d, 0xffff, v%d' % (QR + 4, QR + 4))
                k('v_lshl_or_b32 v%d, v%d, 16, v%d' % (QR + 4, QR + 10, QR + 4))
                k('buffer_store_dword v%d, v%d, s[16:19], s43 offen' % (QR + 4, BT + 5))
            else:
                softmax_pm(k, PD, KR + 12 * hi, KR + 12 * hi + 6)
    k('s_barrier')
    row_addrs(k, 1)
    for hi in range(2):
        hl = 2 * s + hi
        for sg in range(2):
            base = (hl * 2 + sg) * 24
            r = KR + 12 * hi + 6 * sg
            k('ds_write_b64 v%d, %s offset:%d' % (TMP + 28, r2(r), 2 * base))
            k('ds_write_b64 v%d, %s offset:%d' % (TMP + 28, r2(r + 2), 2 * (base + 8)))
            k('ds_write_b16 v%d, v%d offset:%d' % (TMP + 28, r + 4, 2 * (base + 16)))
    write_v(k, s, 1)
    k('s_waitcnt lgkmcnt(0)')
    k('s_barrier')
    k('s_mul_i32 s42, s24, 24')
    k('s_lshr_b32 s43, s24, 1'); k('s_mul_i32 s43, s43, 20'); k('s_add_u32 s43, s43, 192')
    k('s_lshl_b32 s46, s30, 3'); k('s_add_u32 s46, s46, s24'); k('s_add_u32 s46, s46, 32')
    D = kv_stage(k, 1)
    store_part(k, D)

def gen_k1_full():
    k = Kernel('k1_kernel')
    prologue(k)
    k('s_cmp_eq_u32 s26, 0')
    k('s_cbranch_scc0 k1_role1')
    for s in range(2):
        if s == 1: k.label('k1_role1')
        role_prologue(k, s)
        k('s_cmp_eq_u32 s29, 0')
        k('s_cbranch_scc1 k1_nophi%d' % s)
        wphi_loads(k, s)
        k.label('k1_nophi%d' % s)
        main_loop(k, s)
        exchange(k, s)
        k('s_cmp_eq_u32 s29, 0')
        k('s_cbranch_scc0 k1_epb%d' % s)
        epilogue_a(k, s)
        k('s_endpgm')
        k.label('k1_epb%d' % s)
        epilogue_b(k, s)
        k('s_endpgm')
    k.label('k1_end')
    k('s_endpgm')
    return k

if __name__ == '__main__':
    k = gen_k1_full()
    open('k1_test.s', 'w').write(file_text([(k, 256, 56)], [('k1_kernel', 256, 512, 3 * SLOT)]))
    print(k.stats)
```

```python
from common import *
from layout import *
def r4(b): return 'v[%d:%d]' % (b, b + 3)
def r16(b): return 'v[%d:%d]' % (b, b + 15)

VL = 200
VT = 202
def reduce_partials(k, br):
    nt = 1 if br == 0 else 2
    L = 0
    k('v_lshlrev_b32 v%d, 4, v%d' % (VT, VL))
    for sg in range(nt):
        for tbi in range(4):
            k('s_lshl_b32 s40, s24, 2'); k('s_add_u32 s40, s40, %d' % tbi)
            k('s_mul_i32 s40, s40, 96'); k('s_add_u32 s40, s40, s33'); k('s_add_u32 s40, s40, %d' % sg)
            k('s_mul_i32 s40, s40, 3072'); k('s_add_u32 s40, s40, %d' % PART_OFF)
            for q in range(3):
                k('buffer_load_dwordx4 %s, v%d, s[8:11], s40 offen offset:%d' % (r4(L + (sg * 4 + tbi) * 12 + 4 * q), VT, q * 1024))
    for sg in range(nt):
        b = L + sg * 48
        for i in range(12):
            k('v_add_f32 v%d, v%d, v%d' % (b + i, b + i, b + 12 + i))
            k('v_add_f32 v%d, v%d, v%d' % (b + 24 + i, b + 24 + i, b + 36 + i))
        for i in range(12):
            k('v_add_f32 v%d, v%d, v%d' % (b + i, b + i, b + 24 + i))
    k('s_mul_i32 s40, s24, 6144')
    k('v_add_u32 v%d, s40, v%d' % (VT + 1, VT))
    for sg in range(nt):
        for q in range(3):
            k('ds_write_b128 v%d, %s offset:%d' % (VT + 1, r4(L + sg * 48 + 4 * q), (sg * 3 + q) * 1024))
    k('s_waitcnt lgkmcnt(0)')
    k('s_barrier')
    S = []
    for sg in range(nt):
        b = L + sg * 48
        for w in range(4):
            for q in range(3):
                k('ds_read_b128 %s, v%d offset:%d' % (r4(b + w * 12 + 4 * q), VT, w * 6144 + (sg * 3 + q) * 1024))
        for i in range(12):
            k('v_add_f32 v%d, v%d, v%d' % (b + i, b + i, b + 12 + i))
        for i in range(12):
            k('v_add_f32 v%d, v%d, v%d' % (b + i, b + i, b + 24 + i))
        for i in range(12):
            k('v_add_f32 v%d, v%d, v%d' % (b + i, b + i, b + 36 + i))
        S.append(b)
    return S

def make_afrags(k, br, S, AF):
    t = VT + 2
    if br == 0:
        b = S[0]
        k('v_lshrrev_b32 v%d, 5, v%d' % (t, VL))
        k('v_lshlrev_b32 v%d, 2, v%d' % (t, t))
        k('v_subrev_u32 v%d, s34, v%d' % (t, t))
        for r in range(12):
            k('v_add_u32 v%d, %d, v%d' % (t + 1, 8 * (r // 4) + r % 4, t))
            k('v_cmp_gt_u32 vcc, 18, v%d' % (t + 1))
            k('v_cndmask_b32 v%d, 0, v%d, vcc' % (b + r, b + r))
        for i in range(6): k('v_cvt_pk_bf16_f32 v%d, v%d, v%d' % (AF + i, b + 2 * i, b + 2 * i + 1))
        k('v_mov_b32 v%d, 0' % (AF + 6)); k('v_mov_b32 v%d, 0' % (AF + 7))
    else:
        for sg in range(2):
            for i in range(4): k('v_cvt_pk_bf16_f32 v%d, v%d, v%d' % (AF + 4 * sg + i, S[sg] + 2 * i, S[sg] + 2 * i + 1))
        k('v_cvt_pk_bf16_f32 v%d, v%d, v%d' % (AF + 8, S[0] + 8, S[1] + 8))
        for i in range(1, 4): k('v_mov_b32 v%d, 0' % (AF + 8 + i))

def ostage(k, br, AF):
    t = VT + 2
    nk = 2 if br == 0 else 3
    BQ = 100
    D = 150
    P = 170
    for i in range(4):
        if br == 0:
            k('s_add_u32 s40, s35, %d' % i); k('s_lshl_b32 s40, s40, 3'); k('s_add_u32 s40, s40, s36')
            k('s_mul_i32 s40, s40, 5'); k('s_add_u32 s40, s40, s37')
            k('s_lshl_b32 s40, s40, 10'); k('s_add_u32 s40, s40, %d' % PHQA_OFF)
            for kap in range(2):
                k('buffer_load_dwordx4 %s, v%d, s[8:11], s40 offen offset:%d' % (r4(BQ + i * 12 + 4 * kap), VT, kap * 1024))
        else:
            k('s_add_u32 s40, s35, %d' % i); k('s_lshl_b32 s40, s40, 5'); k('s_add_u32 s40, s40, s32')
            k('s_lshl_b32 s41, s40, 11'); k('s_add_u32 s41, s41, %d' % PHQB_OFF)
            k('s_lshl_b32 s42, s40, 8'); k('s_add_u32 s42, s42, %d' % PHQB2_OFF)
            for sg in range(2):
                k('buffer_load_dwordx4 %s, v%d, s[8:11], s41 offen offset:%d' % (r4(BQ + i * 12 + 4 * sg), VT, sg * 1024))
            k('buffer_load_dword v%d, v%d, s[8:11], s42 offen' % (BQ + i * 12 + 8, t + 6))
            for z in range(1, 4): k('v_mov_b32 v%d, 0' % (BQ + i * 12 + 8 + z))
    for i in range(4):
        for kap in range(nk):
            k('v_mfma_f32_32x32x16_bf16 %s, %s, %s, %s' % (r16(D), r4(AF + 4 * kap), r4(BQ + i * 12 + 4 * kap), '0' if kap == 0 else r16(D)))
        k('v_cvt_pk_bf16_f32 v%d, v%d, v%d' % (t, D + 10, D + 10))
        k('v_lshlrev_b32 v%d, 16, v%d' % (t, t))
        k('v_add_f32 v%d, 0x358637bd, v%d' % (t, t))
        k('v_cvt_pk_bf16_f32 v%d, v%d, v%d' % (t, t, t))
        k('v_lshlrev_b32 v%d, 16, v%d' % (t, t))
        k('v_rcp_f32 v%d, v%d' % (t, t))
        for p in range(5): k('v_cvt_pk_bf16_f32 v%d, v%d, v%d' % (P + p, D + 2 * p, D + 2 * p + 1))
        for p in range(5):
            k('v_lshlrev_b32 v%d, 16, v%d' % (D + 2 * p, P + p))
            k('v_and_b32 v%d, 0xffff0000, v%d' % (D + 2 * p + 1, P + p))
        for r in range(10): k('v_mul_f32 v%d, v%d, v%d' % (D + r, D + r, t))
        for p in range(5): k('v_cvt_pk_bf16_f32 v%d, v%d, v%d' % (P + p, D + 2 * p, D + 2 * p + 1))
        k('s_add_u32 s40, s38, %d' % (i * 2048))
        k('s_add_u32 s41, s39, %d' % (i * 2048))
        k('buffer_store_dwordx4 %s, v%d, s[8:11], s40 offen' % (r4(P), t + 4))
        k('buffer_store_dword v%d, v%d, s[8:11], s41 offen' % (P + 4, t + 5))

def gen_k2a():
    k = Kernel('k2a_kernel')
    k('s_cmp_ge_u32 s2, 256')
    k('s_cbranch_scc1 k2a_end')
    k('s_load_dwordx2 s[4:5], s[0:1], 80')
    k('v_lshrrev_b32 v%d, 6, v0' % VT)
    k('v_and_b32 v%d, 63, v0' % VL)
    k('v_readfirstlane_b32 s24, v%d' % VT)
    k('s_waitcnt lgkmcnt(0)')
    srd(k, 8, 's4', 's5', 0x10000000)
    k('s_lshr_b32 s30, s2, 2')
    k('s_and_b32 s31, s2, 3')
    k('s_and_b32 s32, s30, 31')
    k('s_lshr_b32 s29, s30, 5')
    k('s_and_b32 s37, s32, 3')
    k('s_lshr_b32 s36, s32, 2')
    k('s_lshl_b32 s34, s37, 1')
    k('s_lshl_b32 s35, s31, 4'); k('s_lshl_b32 s40, s24, 2'); k('s_add_u32 s35, s35, s40')
    k('s_mul_i32 s40, s29, 18'); k('s_lshr_b32 s41, s32, 1'); k('s_add_u32 s40, s40, s41')
    k('s_lshl_b32 s40, s40, 7'); k('s_lshl_b32 s41, s35, 1'); k('s_add_u32 s40, s40, s41'); k('s_lshl_b32 s40, s40, 10')
    k('s_and_b32 s41, s32, 1'); k('s_lshl_b32 s41, s41, 9'); k('s_add_u32 s40, s40, s41'); k('s_add_u32 s38, s40, %d' % O_OFF)
    k('s_mul_i32 s40, s29, 18'); k('s_lshr_b32 s41, s32, 4'); k('s_add_u32 s40, s40, s41'); k('s_add_u32 s40, s40, 16')
    k('s_lshl_b32 s40, s40, 7'); k('s_lshl_b32 s41, s35, 1'); k('s_add_u32 s40, s40, s41'); k('s_lshl_b32 s40, s40, 10')
    k('s_and_b32 s41, s32, 15'); k('s_lshr_b32 s41, s41, 2'); k('s_lshl_b32 s41, s41, 8'); k('s_add_u32 s40, s40, s41')
    k('s_and_b32 s41, s32, 3'); k('s_lshl_b32 s41, s41, 2'); k('s_add_u32 s40, s40, s41'); k('s_add_u32 s39, s40, %d' % O_OFF)
    t = VT + 2
    k('v_bfe_u32 v%d, v%d, 4, 1' % (t, VL)); k('v_lshlrev_b32 v%d, 10, v%d' % (t, t))
    k('v_and_b32 v%d, 15, v%d' % (t + 1, VL)); k('v_lshl_add_u32 v%d, v%d, 4, v%d' % (t, t + 1, t))
    k('v_lshrrev_b32 v%d, 5, v%d' % (t + 1, VL))
    k('v_lshl_add_u32 v%d, v%d, 8, v%d' % (t + 4, t + 1, t))
    k('v_mov_b32 v%d, 0x7fff0000' % (t + 2))
    k('v_cmp_eq_u32 vcc, 0, v%d' % (t + 1))
    k('v_cndmask_b32 v%d, v%d, v%d, vcc' % (t + 5, t + 2, t))
    k('v_lshlrev_b32 v%d, 2, v%d' % (t + 6, VL))
    k('s_cmp_eq_u32 s29, 0')
    k('s_cbranch_scc0 k2a_b')
    for br in range(2):
        if br == 1: k.label('k2a_b')
        if br == 0: k('s_mov_b32 s33, s32')
        else:
            k('s_lshl_b32 s33, s32, 1'); k('s_add_u32 s33, s33, 32')
        S = reduce_partials(k, br)
        AF = 184
        make_afrags(k, br, S, AF)
        ostage(k, br, AF)
        k('s_branch k2a_side') if br == 0 else None
    k.label('k2a_side')
    side_jobs(k)
    k.label('k2a_end')
    k('s_endpgm')
    return k

def side_jobs(k):
    t = VT + 2
    k('s_load_dwordx2 s[12:13], s[0:1], 16')
    k('s_load_dwordx2 s[14:15], s[0:1], 48')
    k('s_load_dwordx2 s[16:17], s[0:1], 0')
    k('s_load_dwordx2 s[18:19], s[0:1], 56')
    k('s_waitcnt lgkmcnt(0)')
    k('v_and_b32 v%d, 15, v%d' % (t, VL))
    k('v_lshrrev_b32 v%d, 4, v%d' % (t + 1, VL))
    for it in range(2):
        k('s_lshl_b32 s40, s2, 2'); k('s_add_u32 s40, s40, s24'); k('s_add_u32 s40, s40, %d' % (1024 * it))
        if it == 1:
            k('s_cmp_ge_u32 s40, 1440')
            k('s_cbranch_scc1 k2a_gate')
        k('s_mul_i32 s41, s40, 52429'); k('s_lshr_b32 s41, s41, 18')
        k('s_mul_i32 s42, s41, 5'); k('s_sub_u32 s42, s40, s42')
        k('s_mul_i32 s43, s41, 58255'); k('s_lshr_b32 s43, s43, 20')
        k('s_mul_i32 s44, s43, 18'); k('s_sub_u32 s44, s41, s44')
        k('s_and_b32 s45, s43, 7'); k('s_lshr_b32 s46, s43, 3')
        k('s_cmp_eq_u32 s46, 0')
        k('s_cselect_b32 s20, s12, s14'); k('s_cselect_b32 s21, s13, s15')
        k('s_and_b32 s21, s21, 0xffff'); k('s_mov_b32 s22, %d' % (576 * 1152)); k('s_mov_b32 s23, 0x20000')
        k('s_mul_i32 s47, s45, 72'); k('s_lshl_b32 s48, s42, 4'); k('s_add_u32 s47, s47, s48')
        k('v_add_u32 v%d, s48, v%d' % (t + 2, t))
        k('v_add_u32 v%d, s47, v%d' % (t + 3, t))
        k('v_lshlrev_b32 v%d, 1, v%d' % (t + 3, t + 3))
        k('v_mov_b32 v%d, 0x7fff0000' % (t + 4))
        k('v_cmp_gt_u32 vcc, 72, v%d' % (t + 2))
        k('v_cndmask_b32 v%d, v%d, v%d, vcc' % (t + 3, t + 4, t + 3))
        k('s_cmp_lt_u32 s44, 16')
        k('s_cbranch_scc0 k2a_wx%d' % it)
        k('v_lshrrev_b32 v%d, 1, v%d' % (t + 5, t + 1)); k('s_lshl_b32 s48, s44, 1'); k('v_add_u32 v%d, s48, v%d' % (t + 5, t + 5))
        k('v_mul_u32_u24 v%d, 18, v%d' % (t + 5, t + 5))
        k('v_and_b32 v%d, 1, v%d' % (t + 6, t + 1)); k('v_lshl_add_u32 v%d, v%d, 2, v%d' % (t + 5, t + 6, t + 5))
        k('v_mul_u32_u24 v%d, 1152, v%d' % (t + 5, t + 5)); k('v_add_u32 v%d, v%d, v%d' % (t + 5, t + 5, t + 3))
        offs = [(j if j < 4 else j + 4) * 1152 for j in range(8)]
        k('s_branch k2a_wl%d' % it)
        k.label('k2a_wx%d' % it)
        k('s_sub_u32 s48, s44, 16'); k('s_lshl_b32 s48, s48, 4')
        k('v_lshlrev_b32 v%d, 2, v%d' % (t + 5, t + 1)); k('v_add_u32 v%d, s48, v%d' % (t + 5, t + 5))
        k('v_mul_u32_u24 v%d, 18, v%d' % (t + 5, t + 5)); k('v_add_u32 v%d, 16, v%d' % (t + 5, t + 5))
        k('v_mul_u32_u24 v%d, 1152, v%d' % (t + 5, t + 5)); k('v_add_u32 v%d, v%d, v%d' % (t + 5, t + 5, t + 3))
        k('s_mov_b32 s49, 1')
        k('s_branch k2a_wl2%d' % it)
        k.label('k2a_wl%d' % it)
        k('s_mov_b32 s49, 0')
        k.label('k2a_wl2%d' % it)
        for j in range(8):
            moff = (j if j < 4 else j + 4) * 1152; xoff = (j // 2) * 18 * 1152 + (j % 2) * 1152
            k('s_mul_i32 s50, s49, %d' % (xoff - moff))
            k('s_add_u32 s50, s50, %d' % moff)
            k('buffer_load_ushort v%d, v%d, s[20:23], s50 offen' % (t + 8 + j, t + 5))
        for p in range(4):
            k('v_lshl_or_b32 v%d, v%d, 16, v%d' % (t + 16 + p, t + 8 + 2 * p + 1, t + 8 + 2 * p))
        k('s_lshl_b32 s40, s40, 10'); k('s_add_u32 s40, s40, %d' % WOT_OFF)
        k('v_lshlrev_b32 v%d, 4, v%d' % (t + 7, VL))
        k('buffer_store_dwordx4 %s, v%d, s[8:11], s40 offen' % (r4(t + 16), t + 7))
    k.label('k2a_gate')
    srd(k, 20, 's16', 's17', 2048 * 1152)
    srd(k, 52, 's18', 's19', 1152)
    k('v_lshlrev_b32 v%d, 1, v%d' % (t, VL))
    for i in range(9): k('buffer_load_ushort v%d, v%d, s[52:55], 0 offen offset:%d' % (t + 8 + i, t, i * 128))
    k('s_lshl_b32 s40, s2, 3'); k('s_lshl_b32 s41, s24, 1'); k('s_add_u32 s40, s40, s41')
    for tk in range(2):
        k('s_add_u32 s41, s40, %d' % tk); k('s_mul_i32 s42, s41, 1152')
        for i in range(9): k('buffer_load_ushort v%d, v%d, s[20:23], s42 offen offset:%d' % (t + 20 + i, t, i * 128))
        k('v_mov_b32 v%d, 0' % (t + 1))
        for i in range(9):
            k('v_lshlrev_b32 v%d, 16, v%d' % (t + 2, t + 8 + i)); k('v_lshlrev_b32 v%d, 16, v%d' % (t + 3, t + 20 + i))
            k('v_mul_f32 v%d, v%d, v%d' % (t + 2, t + 2, t + 3))
            k('v_cvt_pk_bf16_f32 v%d, v%d, v%d' % (t + 2, t + 2, t + 2))
            k('v_lshlrev_b32 v%d, 16, v%d' % (t + 2, t + 2))
            k('v_add_f32 v%d, v%d, v%d' % (t + 1, t + 1, t + 2))
        k('v_lshlrev_b32 v%d, 2, v%d' % (t + 2, VL))
        for mask in (1, 2, 4, 8, 16, 32):
            k('v_xor_b32 v%d, %d, v%d' % (t + 3, mask * 4, t + 2))
            k('ds_bpermute_b32 v%d, v%d, v%d' % (t + 4, t + 3, t + 1))
            k('v_add_f32 v%d, v%d, v%d' % (t + 1, t + 1, t + 4))
        k('v_cvt_pk_bf16_f32 v%d, v%d, v%d' % (t + 1, t + 1, t + 1)); k('v_lshlrev_b32 v%d, 16, v%d' % (t + 1, t + 1))
        k('v_mul_f32 v%d, 0xbfb8aa3b, v%d' % (t + 1, t + 1))
        k('v_exp_f32 v%d, v%d' % (t + 1, t + 1))
        k('v_add_f32 v%d, 1.0, v%d' % (t + 1, t + 1))
        k('v_rcp_f32 v%d, v%d' % (t + 1, t + 1))
        k('v_cvt_pk_bf16_f32 v%d, v%d, v%d' % (t + 1, t + 1, t + 1)); k('v_lshlrev_b32 v%d, 16, v%d' % (t + 1, t + 1))
        k('s_lshl_b32 s42, s41, 2'); k('s_add_u32 s42, s42, %d' % G_OFF)
        k('v_mov_b32 v%d, 0' % (t + 2))
        k('v_cmp_eq_u32 vcc, 0, v%d' % VL)
        k('v_mov_b32 v%d, 0x7fff0000' % (t + 3))
        k('v_cndmask_b32 v%d, v%d, v%d, vcc' % (t + 2, t + 3, t + 2))
        k('buffer_store_dword v%d, v%d, s[8:11], s42 offen' % (t + 1, t + 2))

if __name__ == '__main__':
    k = gen_k2a()
    open('k2a_test.s', 'w').write(file_text([(k, 240, 60)], [('k2a_kernel', 256, 256, 24576)]))
    print(k.stats)
```

```python
from common import *
from layout import *

def gen_k2b():
    k = Kernel('k2b_kernel')
    ACC = 0
    RING = 80
    VA, VB0 = 188, 189
    VT = 194
    def acc(mt, tt): return ACC + (mt * 4 + tt) * 4
    def ra(slot, mt): return RING + slot * 36 + mt * 4
    def rb(slot, tt): return RING + slot * 36 + 20 + tt * 4
    def r4(b): return 'v[%d:%d]' % (b, b + 3)
    k('s_cmp_ge_u32 s2, 256')
    k('s_cbranch_scc1 k2b_end')
    k('s_load_dwordx2 s[4:5], s[0:1], 80')
    k('s_load_dwordx2 s[6:7], s[0:1], 64')
    k('v_lshrrev_b32 v%d, 6, v0' % VT)
    k('v_and_b32 v%d, 63, v0' % (VT + 1))
    k('v_readfirstlane_b32 s16, v%d' % VT)
    k('s_waitcnt lgkmcnt(0)')
    srd(k, 8, 's4', 's5', 0x10000000)
    srd(k, 12, 's6', 's7', 2048 * 576 * 2)
    k('s_and_b32 s17, s2, 31')
    k('s_lshr_b32 s18, s2, 5')
    k('s_lshr_b32 s19, s16, 1')
    k('s_and_b32 s20, s16, 1')
    k('s_lshl_b32 s21, s19, 3')
    k('s_add_u32 s21, s21, s18')
    k('s_mul_i32 s21, s21, 18')
    k('s_mul_i32 s22, s20, 9')
    k('s_add_u32 s21, s21, s22')
    k('s_mul_i32 s21, s21, 5120')
    k('s_add_u32 s21, s21, %d' % WOT_OFF)
    k('s_mul_i32 s23, s19, 18')
    k('s_mul_i32 s22, s20, 9')
    k('s_add_u32 s23, s23, s22')
    k('s_lshl_b32 s23, s23, 7')
    k('s_lshl_b32 s22, s17, 2')
    k('s_add_u32 s23, s23, s22')
    k('s_lshl_b32 s23, s23, 10')
    k('s_add_u32 s23, s23, %d' % O_OFF)
    k('v_lshlrev_b32 v%d, 4, v%d' % (VA, VT + 1))
    k('v_and_b32 v%d, 15, v%d' % (VT + 2, VT + 1))
    k('v_lshrrev_b32 v%d, 4, v%d' % (VT + 3, VT + 1))

    for i in range(80): k('v_mov_b32 v%d, 0' % (ACC + i))

    def issue(step):
        slot = step % 3
        for mt in range(5):
            if mt < 4:
                k('buffer_load_dwordx4 %s, v%d, s[8:11], s21 offen offset:%d' % (r4(ra(slot, mt)), VA, mt * 1024))
            else:
                k('buffer_load_dwordx4 %s, v%d, s[8:11], s24 offen' % (r4(ra(slot, mt)), VA))
        for tt in range(4):
            k('buffer_load_dwordx4 %s, v%d, s[8:11], s23 offen offset:%d' % (r4(rb(slot, tt)), VA, tt * 1024))
        k('s_add_u32 s23, s23, 131072')
        k('s_add_u32 s21, s21, 5120')
        k('s_add_u32 s24, s21, 4096')
    k('s_add_u32 s24, s21, 4096')
    for st in range(3): issue(st)
    for st in range(9):
        slot = st % 3
        for mt in range(5):
            for tt in range(4):
                k('v_mfma_f32_16x16x32_bf16 %s, %s, %s, %s' % (r4(acc(mt, tt)), r4(ra(slot, mt)), r4(rb(slot, tt)), r4(acc(mt, tt))))
        if st + 3 < 9: issue(st + 3)
    k('s_lshl_b32 s25, s17, 6')
    k('s_lshl_b32 s26, s16, 4')
    k('s_add_u32 s25, s25, s26')
    k('v_add_u32 v%d, s25, v%d' % (VT + 4, VT + 2))
    k('v_lshlrev_b32 v%d, 2, v%d' % (VT + 5, VT + 4))
    k('s_mov_b32 s27, %d' % G_OFF)
    k('buffer_load_dword v%d, v%d, s[8:11], s27 offen' % (VT + 6, VT + 5))
    k('s_mul_i32 s28, s16, 20480')
    k('v_lshlrev_b32 v%d, 4, v%d' % (VT + 7, VT + 1))
    k('v_add_u32 v%d, s28, v%d' % (VT + 7, VT + 7))
    for tt in range(4):
        for mt in range(5):
            k('ds_write_b128 v%d, %s offset:%d' % (VT + 7, r4(acc(mt, tt)), (tt * 5 + mt) * 1024))
    k('s_waitcnt lgkmcnt(0)')
    k('s_barrier')
    k('s_mul_i32 s28, s16, 5120')
    k('v_lshlrev_b32 v%d, 4, v%d' % (VT + 7, VT + 1))
    k('v_add_u32 v%d, s28, v%d' % (VT + 7, VT + 7))
    R = RING
    k('v_add_u32 v%d, 40960, v%d' % (VT + 12, VT + 7))
    for src in range(4):
        for mt in range(5):
            k('ds_read_b128 %s, v%d offset:%d' % (r4(R + (src * 5 + mt) * 4), (VT + 7) if src < 2 else (VT + 12), (src % 2) * 20480 + mt * 1024))
    G, OMG = VT + 6, VT + 8
    k('v_sub_f32 v%d, 1.0, v%d' % (OMG, G))
    k('v_cvt_pk_bf16_f32 v%d, v%d, v%d' % (OMG, OMG, OMG))
    k('v_lshlrev_b32 v%d, 16, v%d' % (OMG, OMG))
    k('v_mul_u32_u24 v%d, 1152, v%d' % (VT + 9, VT + 4))
    k('s_mul_i32 s29, s18, 144')
    k('v_lshl_add_u32 v%d, v%d, 3, v%d' % (VT + 9, VT + 3, VT + 9))
    k('v_add_u32 v%d, s29, v%d' % (VT + 9, VT + 9))
    k('v_cmp_gt_u32 vcc, 2, v%d' % (VT + 3))
    k('v_mov_b32 v%d, 0x7ffffff0' % (VT + 11))
    k('v_cndmask_b32 v%d, v%d, v%d, vcc' % (VT + 10, VT + 11, VT + 9))
    for mt in range(5):
        a0 = R + (0 * 5 + mt) * 4; a1 = R + (1 * 5 + mt) * 4; b0 = R + (2 * 5 + mt) * 4; b1 = R + (3 * 5 + mt) * 4
        T = ACC + mt * 16
        for i in range(4):
            k('v_add_f32 v%d, v%d, v%d' % (a0 + i, a0 + i, a1 + i))
            k('v_add_f32 v%d, v%d, v%d' % (b0 + i, b0 + i, b1 + i))
        for (src, dst) in ((a0, T), (b0, T + 4)):
            k('v_cvt_pk_bf16_f32 v%d, v%d, v%d' % (dst, src, src + 1))
            k('v_cvt_pk_bf16_f32 v%d, v%d, v%d' % (dst + 1, src + 2, src + 3))
        for (pk, dst, mul) in ((T, a0, G), (T + 4, b0, OMG)):
            for h in range(2):
                k('v_lshlrev_b32 v%d, 16, v%d' % (dst + 2 * h, pk + h))
                k('v_and_b32 v%d, 0xffff0000, v%d' % (dst + 2 * h + 1, pk + h))
            for i in range(4):
                k('v_mul_f32 v%d, v%d, v%d' % (dst + i, mul, dst + i))
        for (src, dst) in ((a0, T), (b0, T + 4)):
            k('v_cvt_pk_bf16_f32 v%d, v%d, v%d' % (dst, src, src + 1))
            k('v_cvt_pk_bf16_f32 v%d, v%d, v%d' % (dst + 1, src + 2, src + 3))
        for (pk, dst) in ((T, a0), (T + 4, b0)):
            for h in range(2):
                k('v_lshlrev_b32 v%d, 16, v%d' % (dst + 2 * h, pk + h))
                k('v_and_b32 v%d, 0xffff0000, v%d' % (dst + 2 * h + 1, pk + h))
        for i in range(4):
            k('v_add_f32 v%d, v%d, v%d' % (a0 + i, a0 + i, b0 + i))
        k('v_cvt_pk_bf16_f32 v%d, v%d, v%d' % (T + 8, a0, a0 + 1))
        k('v_cvt_pk_bf16_f32 v%d, v%d, v%d' % (T + 9, a0 + 2, a0 + 3))
        k('buffer_store_dwordx2 v[%d:%d], v%d, s[12:15], 0 offen offset:%d' % (T + 8, T + 9, (VT + 10) if mt == 4 else (VT + 9), mt * 32))
    k.label('k2b_end')
    k('s_endpgm')
    return k

if __name__ == '__main__':
    k = gen_k2b()
    open('k2b_test.s', 'w').write(file_text([(k, 208, 40)], [('k2b_kernel', 256, 256, 81920)]))
    print(k.stats)
```

```python
PHQA_OFF = 0
PHQA_SZ = 64 * 8 * 5 * 1024
PHQB_OFF = PHQA_OFF + PHQA_SZ
PHQB_SZ = 64 * 32 * 2 * 1024
PHQB2_OFF = PHQB_OFF + PHQB_SZ
PHQB2_SZ = 64 * 32 * 256
PART_OFF = PHQB2_OFF + PHQB2_SZ
PART_SZ = 16 * 96 * 3072
O_OFF = PART_OFF + PART_SZ
O_SZ = 2048 * 1152 * 2
WOT_OFF = O_OFF + O_SZ
WOT_SZ = 2 * 8 * 18 * 5 * 1024
G_OFF = WOT_OFF + WOT_SZ
G_SZ = 2048 * 4
WS_USED = G_OFF + G_SZ
```

```python
import sys
from common import *
from k1e import gen_k1_full, SLOT
from k2a import gen_k2a
from k2b import gen_k2b
hdr = open('gated_mix__linear_attn_block__linear_kernel_hedgehog__prompt.s.ref').read().split('; @launch')[0]
k1 = gen_k1_full(); k2a = gen_k2a(); k2b = gen_k2b()
txt = file_text([(k1, 256, 56), (k2a, 240, 60), (k2b, 208, 40)],
                [('k1_kernel', 256, 512, 3 * SLOT), ('k2a_kernel', 256, 256, 24576), ('k2b_kernel', 256, 256, 81920)], hdr)
out = sys.argv[1] if len(sys.argv) > 1 else 'full.s'
open(out, 'w').write(txt)
print(len(txt), 'bytes')
```

```python
from k1 import *

PK = 112
PHI = 142
TMP = 162
WPH = 208
PITCH = {0: 328, 1: 584}
VCOL = {0: 72, 1: 192}

def pk(ui, h): return PK + 2 * ui + h

def cvt_units(k, s):
    for ui, U in enumerate(uset(s)):
        a = acc(U // 4) + 4 * (U % 4)
        k('v_cvt_pk_bf16_f32 v%d, v%d, v%d' % (pk(ui, 0), a, a + 1))
        k('v_cvt_pk_bf16_f32 v%d, v%d, v%d' % (pk(ui, 1), a + 2, a + 3))

def phi_a_unit(k, src, dst):
    t = TMP
    for h in range(2):
        a0, a1, e0, e1 = t + 4 * h, t + 4 * h + 1, t + 4 * h + 2, t + 4 * h + 3
        k('v_lshlrev_b32 v%d, 16, v%d' % (a0, src + h))
        k('v_and_b32 v%d, 0xffff0000, v%d' % (a1, src + h))
        k('v_min_f32 v%d, 0, v%d' % (e0, a0)); k('v_min_f32 v%d, 0, v%d' % (e1, a1))
        k('v_mul_f32 v%d, 0x3fb8aa3b, v%d' % (e0, e0)); k('v_mul_f32 v%d, 0x3fb8aa3b, v%d' % (e1, e1))
        k('v_exp_f32 v%d, v%d' % (e0, e0)); k('v_exp_f32 v%d, v%d' % (e1, e1))
        k('v_max_f32 v%d, 0, v%d' % (a0, a0)); k('v_max_f32 v%d, 0, v%d' % (a1, a1))
        k('v_add_f32 v%d, v%d, v%d' % (a0, a0, e0)); k('v_add_f32 v%d, v%d, v%d' % (a1, a1, e1))
        k('v_cvt_pk_bf16_f32 v%d, v%d, v%d' % (e0, a0, a1))
        k('v_lshlrev_b32 v%d, 16, v%d' % (a0, e0))
        k('v_and_b32 v%d, 0xffff0000, v%d' % (a1, e0))
        k('v_add_f32 v%d, 0x358637bd, v%d' % (a0, a0)); k('v_add_f32 v%d, 0x358637bd, v%d' % (a1, a1))
        k('v_cvt_pk_bf16_f32 v%d, v%d, v%d' % (dst + h, a0, a1))

def row_addrs(k, br):
    t = TMP
    k('v_and_b32 v%d, 31, v%d' % (t, VLANE))
    k('v_lshrrev_b32 v%d, 5, v%d' % (t + 1, VLANE))
    k('s_lshl_b32 s40, s25, 5')
    k('v_add_u32 v%d, s40, v%d' % (t, t))
    k('v_mul_u32_u24 v%d, %d, v%d' % (t, PITCH[br], t))
    k('v_lshl_add_u32 v%d, v%d, 3, v%d' % (t + 28, t + 1, t))
    k('v_mul_u32_u24 v%d, 12, v%d' % (t + 1, t + 1))
    k('v_add_u32 v%d, v%d, v%d' % (t + 29, t + 1, t))

def write_v(k, s, br):
    t = TMP
    for ui, U in enumerate(uset(s)):
        if U // 9 != 2: continue
        u = U - 18
        for pp in range(2):
            F0 = 8 * u + 2 * pp; F1 = F0 + 4
            if F0 >= 72: continue
            h0 = F0 // 18; h1 = min(F1, 71) // 18
            col0 = VCOL[br] + F0 + 2 * h0
            k('ds_write_b32 v%d, v%d offset:%d' % ((t + 28) if h1 == h0 else (t + 29), pk(ui, pp), 2 * col0))

def store_phq_a(k, s):
    t = TMP
    k('s_lshl_b32 s40, s27, 2'); k('s_add_u32 s40, s40, s25')
    k('s_lshl_b32 s40, s40, 3'); k('s_add_u32 s40, s40, s30')
    k('s_mul_i32 s40, s40, 5120')
    k('s_add_u32 s40, s40, %d' % (PHQA_OFF + 2048 * s))
    k('v_lshlrev_b32 v%d, 4, v%d' % (t, VLANE))
    if s == 0: pairs = [(0, PHI), (1, PHI + 4)]
    else:
        k('v_mov_b32 v%d, v%d' % (t + 24, PHI + 8)); k('v_mov_b32 v%d, v%d' % (t + 25, PHI + 9))
        k('v_mov_b32 v%d, 0' % (t + 26)); k('v_mov_b32 v%d, 0' % (t + 27))
        pairs = [(2, PHI), (3, PHI + 4), (4, t + 24)]
    for (pi, reg) in pairs:
        k('buffer_store_dwordx4 %s, v%d, s[16:19], s40 offen offset:%d' % (r4(reg), t, (pi - 2 * s) * 1024))

def kv_stage(k, br):
    t = TMP; P = PITCH[br]
    L = VLANE
    k('v_lshrrev_b32 v%d, 5, v%d' % (t, L))
    k('v_lshrrev_b32 v%d, 4, v%d' % (t + 1, L)); k('v_and_b32 v%d, 1, v%d' % (t + 1, t + 1))
    k('v_and_b32 v%d, 15, v%d' % (t + 2, L))
    k('v_lshrrev_b32 v%d, 2, v%d' % (t + 3, t + 2))
    k('v_and_b32 v%d, 3, v%d' % (t + 4, t + 2))
    k('v_lshl_add_u32 v%d, v%d, 3, v%d' % (t + 5, t, t + 3))
    k('v_mul_u32_u24 v%d, %d, v%d' % (t + 5, P, t + 5))
    k('v_lshlrev_b32 v%d, 5, v%d' % (t + 6, t + 1))
    k('v_lshl_add_u32 v%d, v%d, 3, v%d' % (t + 6, t + 4, t + 6))
    k('v_add_u32 v%d, v%d, v%d' % (t + 5, t + 5, t + 6))
    k('s_lshl_b32 s42, s42, 1'); k('s_lshl_b32 s43, s43, 1')
    k('v_add_u32 v%d, s42, v%d' % (t + 6, t + 5))
    k('v_add_u32 v%d, s43, v%d' % (t + 7, t + 5))
    k('v_add_u32 v%d, %d, v%d' % (t + 8, 64 * P, t + 6))
    k('v_add_u32 v%d, %d, v%d' % (t + 9, 64 * P, t + 7))
    k('v_mov_b32 v%d, 0x3f803f80' % (t + 10))
    k('s_mov_b32 s44, 0x00440000'); k('s_mov_b32 s45, 0x00440000')
    A0 = 0; B0 = 32; D = 64
    for kk in range(8):
        va = (t + 6) if kk < 4 else (t + 8); vb = (t + 7) if kk < 4 else (t + 9)
        for q in range(2):
            k('ds_read_b64_tr_b16 %s, v%d offset:%d' % (r2(A0 + 4 * kk + 2 * q), va, (16 * (kk % 4) + 4 * q) * P))
            k('ds_read_b64_tr_b16 %s, v%d offset:%d' % (r2(B0 + 4 * kk + 2 * q), vb, (16 * (kk % 4) + 4 * q) * P))
    for kk in range(8):
        for i in range(4):
            k('v_cndmask_b32 v%d, v%d, v%d, s[44:45]' % (B0 + 4 * kk + i, B0 + 4 * kk + i, t + 10))
        k('v_mfma_f32_32x32x16_bf16 %s, %s, %s, %s' % (r16(D), r4(A0 + 4 * kk), r4(B0 + 4 * kk), '0' if kk == 0 else r16(D)))
    return D

def store_part(k, D):
    t = TMP
    k('s_mul_i32 s40, s27, 96'); k('s_add_u32 s40, s40, s46')
    k('s_mul_i32 s40, s40, 3072'); k('s_add_u32 s40, s40, %d' % PART_OFF)
    k('v_lshlrev_b32 v%d, 4, v%d' % (t, VLANE))
    for q in range(3):
        k('buffer_store_dwordx4 %s, v%d, s[16:19], s40 offen offset:%d' % (r4(D + 4 * q), t, q * 1024))

def epilogue_a(k, s):
    cvt_units(k, s)
    us = uset(s)
    for ui in range(10):
        phi_a_unit(k, pk(ui, 0), PHI + 2 * ui)
    store_phq_a(k, s)
    k('s_barrier')
    row_addrs(k, 0)
    for ui in range(5, 10):
        u = us[ui] - 9
        k('ds_write_b64 v%d, %s offset:%d' % (TMP + 28, r2(PHI + 2 * ui), 16 * u))
    write_v(k, s, 0)
    k('s_waitcnt lgkmcnt(0)')
    k('s_barrier')
    if s == 0:
        k('s_lshl_b32 s42, s25, 4')
        k('s_mul_i32 s43, s25, 20'); k('s_add_u32 s43, s43, 72')
        k('s_lshl_b32 s46, s30, 2'); k('s_add_u32 s46, s46, s25')
        D = kv_stage(k, 0)
        store_part(k, D)
    else:
        side_jobs_k1(k)


def side_jobs_k1(k):
    B = 0
    LM, LX, VN, MM, KQ = B, B + 1, B + 2, B + 3, B + 4
    RW = 8
    GW = 32
    XR = 44
    T = 84
    k('s_load_dwordx2 s[20:21], s[0:1], 16')
    k('s_load_dwordx2 s[22:23], s[0:1], 48')
    k('s_load_dwordx2 s[44:45], s[0:1], 56')
    k('v_and_b32 v%d, 15, v%d' % (MM, VLANE))
    k('v_lshrrev_b32 v%d, 4, v%d' % (KQ, VLANE))
    k('v_lshrrev_b32 v%d, 1, v%d' % (LM, KQ)); k('v_mul_u32_u24 v%d, 18, v%d' % (LM, LM))
    k('v_and_b32 v%d, 1, v%d' % (T, KQ)); k('v_lshl_add_u32 v%d, v%d, 2, v%d' % (LM, T, LM))
    k('v_mul_u32_u24 v%d, 1152, v%d' % (LM, LM))
    k('v_mul_u32_u24 v%d, %d, v%d' % (LX, 72 * 1152, KQ))
    k('s_lshl_b32 s46, s27, 3'); k('s_add_u32 s46, s46, s30'); k('s_lshl_b32 s46, s46, 2'); k('s_add_u32 s46, s46, s25')
    k('s_waitcnt lgkmcnt(0)')
    k('v_mov_b32 v%d, 0x7fff0000' % (T + 1))
    for it in range(3):
        k('s_add_u32 s40, s46, %d' % (512 * it))
        k('s_min_u32 s47, s40, 1439')
        k('s_mul_i32 s41, s47, 52429'); k('s_lshr_b32 s41, s41, 18')
        k('s_mul_i32 s42, s41, 5'); k('s_sub_u32 s42, s47, s42')
        k('s_mul_i32 s43, s41, 58255'); k('s_lshr_b32 s43, s43, 20')
        k('s_mul_i32 s48, s43, 18'); k('s_sub_u32 s48, s41, s48')
        k('s_and_b32 s49, s43, 7'); k('s_lshr_b32 s50, s43, 3')
        k('s_cmp_eq_u32 s50, 0')
        k('s_cselect_b32 s52, s20, s22'); k('s_cselect_b32 s53, s21, s23')
        k('s_and_b32 s53, s53, 0xffff'); k('s_mov_b32 s54, %d' % (576 * 1152)); k('s_mov_b32 s55, 0x20000')
        k('s_mul_i32 s49, s49, 72'); k('s_lshl_b32 s42, s42, 4'); k('s_add_u32 s49, s49, s42')
        k('v_add_u32 v%d, s42, v%d' % (T + 2, MM))
        k('v_add_u32 v%d, s49, v%d' % (T + 3, MM))
        k('v_lshlrev_b32 v%d, 1, v%d' % (T + 3, T + 3))
        k('v_cmp_gt_u32 vcc, 72, v%d' % (T + 2))
        k('v_cndmask_b32 v%d, v%d, v%d, vcc' % (T + 3, T + 1, T + 3))
        k('s_cmp_lt_u32 s48, 16')
        k('s_cselect_b64 vcc, -1, 0')
        k('s_cselect_b32 s51, 1, 0')
        k('v_cndmask_b32 v%d, v%d, v%d, vcc' % (VN, LX, LM))
        k('v_add_u32 v%d, v%d, v%d' % (VN, VN, T + 3))
        k('s_mul_i32 s41, s48, %d' % (36 * 1152))
        k('s_sub_u32 s42, s48, 16'); k('s_mul_i32 s42, s42, %d' % (288 * 1152)); k('s_add_u32 s42, s42, %d' % (16 * 1152))
        k('s_cmp_lt_u32 s48, 16')
        k('s_cselect_b32 s41, s41, s42')
        for j in range(8):
            moff = (j if j < 4 else j + 4) * 1152; xoff = (j // 2) * 18 * 1152 + (j % 2) * 1152
            k('s_mul_i32 s42, s51, %d' % (moff - xoff))
            k('s_add_u32 s42, s42, %d' % xoff)
            k('s_add_u32 s42, s42, s41')
            k('buffer_load_ushort v%d, v%d, s[52:55], s42 offen' % (RW + 8 * it + j, VN))
    srd(k, 52, 's44', 's45', 1152)
    k('v_lshlrev_b32 v%d, 1, v%d' % (T + 4, VLANE))
    for i in range(9): k('buffer_load_ushort v%d, v%d, s[52:55], 0 offen offset:%d' % (GW + i, T + 4, i * 128))
    k('s_lshl_b32 s40, s46, 2')
    for tk in range(4):
        k('s_add_u32 s41, s40, %d' % tk); k('s_mul_i32 s42, s41, 1152')
        for i in range(9): k('buffer_load_ushort v%d, v%d, s[12:15], s42 offen offset:%d' % (XR + 9 * tk + i, T + 4, i * 128))
    k('v_lshlrev_b32 v%d, 4, v%d' % (T + 5, VLANE))
    for it in range(3):
        for p in range(4):
            k('v_lshl_or_b32 v%d, v%d, 16, v%d' % (T + 8 + p, RW + 8 * it + 2 * p + 1, RW + 8 * it + 2 * p))
        k('s_add_u32 s41, s46, %d' % (512 * it))
        k('s_lshl_b32 s42, s41, 10'); k('s_add_u32 s42, s42, %d' % WOT_OFF)
        if it == 2:
            k('s_cmp_lt_u32 s41, 1440')
            k('s_cselect_b64 vcc, -1, 0')
            k('v_cndmask_b32 v%d, v%d, v%d, vcc' % (T + 6, T + 1, T + 5))
            k('buffer_store_dwordx4 %s, v%d, s[16:19], s42 offen' % (r4(T + 8), T + 6))
        else:
            k('buffer_store_dwordx4 %s, v%d, s[16:19], s42 offen' % (r4(T + 8), T + 5))
    for i in range(9): k('v_lshlrev_b32 v%d, 16, v%d' % (GW + i, GW + i))
    for tk in range(4):
        S = T + 12 + tk
        for i in range(9):
            x = XR + 9 * tk + i
            k('v_lshlrev_b32 v%d, 16, v%d' % (x, x))
            k('v_mul_f32 v%d, v%d, v%d' % (x, x, GW + i))
        for i in range(0, 8, 2):
            x = XR + 9 * tk + i
            k('v_cvt_pk_bf16_f32 v%d, v%d, v%d' % (x, x, x + 1))
        x8 = XR + 9 * tk + 8
        k('v_cvt_pk_bf16_f32 v%d, v%d, v%d' % (x8, x8, x8))
        k('v_and_b32 v%d, 0xffff0000, v%d' % (S, x8))
        for i in range(0, 8, 2):
            x = XR + 9 * tk + i
            k('v_lshlrev_b32 v%d, 16, v%d' % (x + 1, x))
            k('v_and_b32 v%d, 0xffff0000, v%d' % (x, x))
            k('v_add_f32 v%d, v%d, v%d' % (S, S, x + 1))
            k('v_add_f32 v%d, v%d, v%d' % (S, S, x))
    for tk in range(4):
        S = T + 12 + tk
        for sh in (1, 2, 4, 8):
            k('v_add_f32_dpp v%d, v%d, v%d row_shr:%d row_mask:0xf bank_mask:0xf bound_ctrl:0' % (S, S, S, sh))
        k('v_add_f32_dpp v%d, v%d, v%d row_bcast:15 row_mask:0xa bank_mask:0xf' % (S, S, S))
        k('v_add_f32_dpp v%d, v%d, v%d row_bcast:31 row_mask:0xc bank_mask:0xf' % (S, S, S))
    for tk in range(4):
        S = T + 12 + tk
        k('v_cvt_pk_bf16_f32 v%d, v%d, v%d' % (S, S, S)); k('v_lshlrev_b32 v%d, 16, v%d' % (S, S))
        k('v_mul_f32 v%d, 0xbfb8aa3b, v%d' % (S, S))
        k('v_exp_f32 v%d, v%d' % (S, S))
        k('v_add_f32 v%d, 1.0, v%d' % (S, S))
        k('v_rcp_f32 v%d, v%d' % (S, S))
        k('v_cvt_pk_bf16_f32 v%d, v%d, v%d' % (S, S, S)); k('v_lshlrev_b32 v%d, 16, v%d' % (S, S))
    k('v_mov_b32 v%d, 0' % (T + 2))
    k('v_cmp_eq_u32 vcc, 63, v%d' % VLANE)
    k('v_cndmask_b32 v%d, v%d, v%d, vcc' % (T + 2, T + 1, T + 2))
    k('s_lshl_b32 s42, s40, 2'); k('s_add_u32 s42, s42, %d' % G_OFF)
    k('buffer_store_dwordx4 %s, v%d, s[16:19], s42 offen' % (r4(T + 12), T + 2))

def gen_k1_a_only():
    k = Kernel('k1_kernel')
    prologue(k)
    k('s_cmp_eq_u32 s29, 1')
    k('s_cbranch_scc1 k1_end')
    k('s_cmp_eq_u32 s26, 0')
    k('s_cbranch_scc0 k1_role1')
    for s in range(2):
        if s == 1: k.label('k1_role1')
        role_prologue(k, s)
        main_loop(k, s)
        exchange(k, s)
        epilogue_a(k, s)
        k('s_endpgm')
    k.label('k1_end')
    k('s_endpgm')
    return k

RAW = 208
WPK = 240

def wphi_loads(k, s):
    t = VT
    k('s_load_dwordx2 s[48:49], s[0:1], 40')
    k('v_and_b32 v%d, 31, v%d' % (t, VLANE))
    k('v_lshrrev_b32 v%d, 5, v%d' % (t + 1, VLANE))
    k('v_mov_b32 v%d, 0x7fff0000' % (t + 2))
    k('v_cmp_eq_u32 vcc, 20, v%d' % t)
    k('v_cndmask_b32 v%d, v%d, 17, vcc' % (t + 3, t + 2))
    k('v_cmp_ge_u32 vcc, 16, v%d' % t)
    k('v_cndmask_b32 v%d, v%d, v%d, vcc' % (t + 3, t + 3, t))
    k('v_cmp_ge_u32 vcc, 17, v%d' % (t + 3))
    k('v_lshlrev_b32 v%d, 1, v%d' % (t + 4, t + 3))
    k('v_cndmask_b32 v%d, v%d, v%d, vcc' % (t + 3, t + 3, t + 4))
    k('v_mul_u32_u24 v%d, 144, v%d' % (t + 4, t + 1))
    k('v_add_u32 v%d, v%d, v%d' % (t + 4, t + 4, t + 3))
    k('v_cmp_eq_u32 vcc, 1, v%d' % (t + 1))
    k('v_cndmask_b32 v%d, v%d, v%d, vcc' % (t + 5, t + 2, t + 3))
    k('v_cndmask_b32 v%d, v%d, v%d, vcc' % (t + 6, t + 3, t + 2))
    k('s_waitcnt lgkmcnt(0)')
    srd(k, 20, 's48', 's49', 32 * 648)
    k('s_lshl_b32 s47, s30, 2')
    for hi in range(2):
        hl = 2 * s + hi; o = (18 * hl) % 8
        k('s_add_u32 s48, s47, %d' % hl)
        k('s_mul_i32 s48, s48, 648')
        for kap in range(2):
            for j in range(8):
                c = 16 * kap + (j if j < 4 else 8 + j - 4) - o
                dst = RAW + (hi * 2 + kap) * 8 + j
                v0ok = 0 <= c < 18; v1ok = 0 <= c + 4 < 18
                if v0ok and v1ok: k('buffer_load_ushort v%d, v%d, s[20:23], s48 offen offset:%d' % (dst, t + 4, c * 36))
                elif v1ok: k('buffer_load_ushort v%d, v%d, s[20:23], s48 offen offset:%d' % (dst, t + 5, (c + 4) * 36))
                elif v0ok: k('buffer_load_ushort v%d, v%d, s[20:23], s48 offen offset:%d' % (dst, t + 6, c * 36))
                else: k('v_mov_b32 v%d, 0' % dst)

def wphi_pack(k):
    for f in range(4):
        for p in range(4):
            k('v_lshl_or_b32 v%d, v%d, 16, v%d' % (WPK + 4 * f + p, RAW + 8 * f + 2 * p + 1, RAW + 8 * f + 2 * p))

LOG2E = '0x3fb8aa3b'
def softmax_pm(k, D, outp, outm):
    t = TMP
    p = t
    c = t + 9
    for i in range(4): k('v_cvt_pk_bf16_f32 v%d, v%d, v%d' % (c + i, D + 2 * i, D + 2 * i + 1))
    k('v_cvt_pk_bf16_f32 v%d, v%d, v%d' % (c + 4, D + 8, D + 8))
    for i in range(4):
        k('v_lshlrev_b32 v%d, 16, v%d' % (p + 2 * i, c + i))
        k('v_and_b32 v%d, 0xffff0000, v%d' % (p + 2 * i + 1, c + i))
    k('v_lshlrev_b32 v%d, 16, v%d' % (p + 8, c + 4))
    mx, mn, t1, t2 = t + 14, t + 15, t + 16, t + 17
    k('v_max3_f32 v%d, v%d, v%d, v%d' % (mx, p, p + 1, p + 2)); k('v_min3_f32 v%d, v%d, v%d, v%d' % (mn, p, p + 1, p + 2))
    for a in (3, 5, 7):
        k('v_max3_f32 v%d, v%d, v%d, v%d' % (mx, mx, p + a, p + a + 1)); k('v_min3_f32 v%d, v%d, v%d, v%d' % (mn, mn, p + a, p + a + 1))
    k('v_mov_b32 v%d, v%d' % (t1, mx)); k('v_mov_b32 v%d, v%d' % (t2, mn))
    k('v_permlane32_swap_b32 v%d, v%d' % (mx, t1)); k('v_permlane32_swap_b32 v%d, v%d' % (mn, t2))
    k('v_max_f32 v%d, v%d, v%d' % (mx, mx, t1)); k('v_min_f32 v%d, v%d, v%d' % (mn, mn, t2))
    k('v_mul_f32 v%d, %s, v%d' % (mx, '0xbfb8aa3b', mx))
    k('v_mul_f32 v%d, %s, v%d' % (mn, LOG2E, mn))
    k('v_mov_b32 v%d, %s' % (t1, LOG2E)); k('v_mov_b32 v%d, 0xbfb8aa3b' % t2)
    ep, em = D, t + 18
    for i in range(9):
        k('v_fma_f32 v%d, v%d, v%d, v%d' % (ep + i, p + i, t1, mx))
        k('v_fma_f32 v%d, v%d, v%d, v%d' % (em + i, p + i, t2, mn))
    for i in range(9):
        k('v_exp_f32 v%d, v%d' % (ep + i, ep + i)); k('v_exp_f32 v%d, v%d' % (em + i, em + i))
    sp, sm = mx, mn
    k('v_add_f32 v%d, v%d, v%d' % (sp, ep, ep + 1)); k('v_add_f32 v%d, v%d, v%d' % (sm, em, em + 1))
    for i in range(2, 9):
        k('v_add_f32 v%d, v%d, v%d' % (sp, sp, ep + i)); k('v_add_f32 v%d, v%d, v%d' % (sm, sm, em + i))
    k('v_mov_b32 v%d, v%d' % (t1, sp)); k('v_mov_b32 v%d, v%d' % (t2, sm))
    k('v_permlane32_swap_b32 v%d, v%d' % (sp, t1)); k('v_permlane32_swap_b32 v%d, v%d' % (sm, t2))
    k('v_add_f32 v%d, v%d, v%d' % (sp, sp, t1)); k('v_add_f32 v%d, v%d, v%d' % (sm, sm, t2))
    k('v_rcp_f32 v%d, v%d' % (sp, sp)); k('v_rcp_f32 v%d, v%d' % (sm, sm))
    for i in range(9):
        k('v_mul_f32 v%d, v%d, v%d' % (ep + i, ep + i, sp)); k('v_mul_f32 v%d, v%d, v%d' % (em + i, em + i, sm))
    for (e, o) in ((ep, outp), (em, outm)):
        for i in range(4): k('v_cvt_pk_bf16_f32 v%d, v%d, v%d' % (o + i, e + 2 * i, e + 2 * i + 1))
        k('v_cvt_pk_bf16_f32 v%d, v%d, v%d' % (o + 4, e + 8, e + 8))

RES = 142
def epilogue_b(k, s):
    us = uset(s)
    cvt_units(k, s)
    wphi_pack(k)
    PD = 0
    KR = 16
    QR = 40
    BT = 52
    k('s_lshl_b32 s40, s27, 2'); k('s_add_u32 s40, s40, s25')
    k('s_lshl_b32 s40, s40, 5')
    k('s_lshl_b32 s41, s30, 2'); k('s_add_u32 s40, s40, s41')
    k('v_lshlrev_b32 v%d, 4, v%d' % (BT + 4, VLANE))
    k('v_lshlrev_b32 v%d, 2, v%d' % (BT + 5, VLANE))
    for hi in range(2):
        hl = 2 * s + hi
        for part in range(2):
            for kap in range(2):
                Ul = 2 * hl + 2 * kap
                ua = 9 * part + Ul
                ia = us.index(ua)
                if ua + 1 in us and (ua + 1) // 9 == part:
                    b = pk(ia, 0)
                else:
                    k('v_mov_b32 v%d, v%d' % (BT, pk(ia, 0))); k('v_mov_b32 v%d, v%d' % (BT + 1, pk(ia, 1)))
                    k('v_mov_b32 v%d, 0' % (BT + 2)); k('v_mov_b32 v%d, 0' % (BT + 3))
                    b = BT
                k('v_mfma_f32_32x32x16_bf16 %s, %s, %s, %s' % (r16(PD), r4(WPK + 4 * (2 * hi + kap)), r4(b), '0' if kap == 0 else r16(PD)))
            if part == 0:
                softmax_pm(k, PD, QR, QR + 6)
                k('s_add_u32 s41, s40, %d' % hl)
                k('s_lshl_b32 s42, s41, 11'); k('s_add_u32 s42, s42, %d' % PHQB_OFF)
                k('s_lshl_b32 s43, s41, 8'); k('s_add_u32 s43, s43, %d' % PHQB2_OFF)
                k('buffer_store_dwordx4 %s, v%d, s[16:19], s42 offen' % (r4(QR), BT + 4))
                k('buffer_store_dwordx4 %s, v%d, s[16:19], s42 offen offset:1024' % (r4(QR + 6), BT + 4))
                k('v_and_b32 v%d, 0xffff, v%d' % (QR + 4, QR + 4))
                k('v_lshl_or_b32 v%d, v%d, 16, v%d' % (QR + 4, QR + 10, QR + 4))
                k('buffer_store_dword v%d, v%d, s[16:19], s43 offen' % (QR + 4, BT + 5))
            else:
                softmax_pm(k, PD, KR + 12 * hi, KR + 12 * hi + 6)
    k('s_barrier')
    row_addrs(k, 1)
    for hi in range(2):
        hl = 2 * s + hi
        for sg in range(2):
            base = (hl * 2 + sg) * 24
            r = KR + 12 * hi + 6 * sg
            k('ds_write_b64 v%d, %s offset:%d' % (TMP + 28, r2(r), 2 * base))
            k('ds_write_b64 v%d, %s offset:%d' % (TMP + 28, r2(r + 2), 2 * (base + 8)))
            k('ds_write_b16 v%d, v%d offset:%d' % (TMP + 28, r + 4, 2 * (base + 16)))
    write_v(k, s, 1)
    k('s_waitcnt lgkmcnt(0)')
    k('s_barrier')
    k('s_mul_i32 s42, s24, 24')
    k('s_lshr_b32 s43, s24, 1'); k('s_mul_i32 s43, s43, 20'); k('s_add_u32 s43, s43, 192')
    k('s_lshl_b32 s46, s30, 3'); k('s_add_u32 s46, s46, s24'); k('s_add_u32 s46, s46, 32')
    D = kv_stage(k, 1)
    store_part(k, D)

def gen_k1_full():
    k = Kernel('k1_kernel')
    prologue(k)
    k('s_cmp_eq_u32 s26, 0')
    k('s_cbranch_scc0 k1_role1')
    for s in range(2):
        if s == 1: k.label('k1_role1')
        role_prologue(k, s)
        main_loop(k, s, after_dma=lambda: wphi_loads(k, s))
        exchange(k, s)
        k('s_cmp_eq_u32 s29, 0')
        k('s_cbranch_scc0 k1_epb%d' % s)
        epilogue_a(k, s)
        k('s_endpgm')
        k.label('k1_epb%d' % s)
        epilogue_b(k, s)
        k('s_endpgm')
    k.label('k1_end')
    k('s_endpgm')
    return k

if __name__ == '__main__':
    k = gen_k1_full()
    open('k1_test.s', 'w').write(file_text([(k, 256, 56)], [('k1_kernel', 256, 512, 3 * SLOT)]))
    print(k.stats)
```

```python
from common import *
from layout import *
def r4(b): return 'v[%d:%d]' % (b, b + 3)
def r16(b): return 'v[%d:%d]' % (b, b + 15)

VL = 200
VT = 202
def reduce_partials(k, br, after_loads=None):
    nt = 1 if br == 0 else 2
    L = 0
    k('v_lshlrev_b32 v%d, 4, v%d' % (VT, VL))
    for sg in range(nt):
        for tbi in range(4):
            k('s_lshl_b32 s40, s24, 2'); k('s_add_u32 s40, s40, %d' % tbi)
            k('s_mul_i32 s40, s40, 96'); k('s_add_u32 s40, s40, s33'); k('s_add_u32 s40, s40, %d' % sg)
            k('s_mul_i32 s40, s40, 3072'); k('s_add_u32 s40, s40, %d' % PART_OFF)
            for q in range(3):
                k('buffer_load_dwordx4 %s, v%d, s[8:11], s40 offen offset:%d' % (r4(L + (sg * 4 + tbi) * 12 + 4 * q), VT, q * 1024))
    if after_loads: after_loads()
    for sg in range(nt):
        b = L + sg * 48
        for i in range(12):
            k('v_add_f32 v%d, v%d, v%d' % (b + i, b + i, b + 12 + i))
            k('v_add_f32 v%d, v%d, v%d' % (b + 24 + i, b + 24 + i, b + 36 + i))
        for i in range(12):
            k('v_add_f32 v%d, v%d, v%d' % (b + i, b + i, b + 24 + i))
    k('s_mul_i32 s40, s24, 6144')
    k('v_add_u32 v%d, s40, v%d' % (VT + 1, VT))
    for sg in range(nt):
        for q in range(3):
            k('ds_write_b128 v%d, %s offset:%d' % (VT + 1, r4(L + sg * 48 + 4 * q), (sg * 3 + q) * 1024))
    k('s_waitcnt lgkmcnt(0)')
    k('s_barrier')
    S = []
    for sg in range(nt):
        b = L + sg * 48
        for w in range(4):
            for q in range(3):
                k('ds_read_b128 %s, v%d offset:%d' % (r4(b + w * 12 + 4 * q), VT, w * 6144 + (sg * 3 + q) * 1024))
        for i in range(12):
            k('v_add_f32 v%d, v%d, v%d' % (b + i, b + i, b + 12 + i))
        for i in range(12):
            k('v_add_f32 v%d, v%d, v%d' % (b + i, b + i, b + 24 + i))
        for i in range(12):
            k('v_add_f32 v%d, v%d, v%d' % (b + i, b + i, b + 36 + i))
        S.append(b)
    return S

def make_afrags(k, br, S, AF):
    t = VT + 2
    if br == 0:
        b = S[0]
        k('v_lshrrev_b32 v%d, 5, v%d' % (t, VL))
        k('v_lshlrev_b32 v%d, 2, v%d' % (t, t))
        k('v_subrev_u32 v%d, s34, v%d' % (t, t))
        for r in range(12):
            k('v_add_u32 v%d, %d, v%d' % (t + 1, 8 * (r // 4) + r % 4, t))
            k('v_cmp_gt_u32 vcc, 18, v%d' % (t + 1))
            k('v_cndmask_b32 v%d, 0, v%d, vcc' % (b + r, b + r))
        for i in range(6): k('v_cvt_pk_bf16_f32 v%d, v%d, v%d' % (AF + i, b + 2 * i, b + 2 * i + 1))
        k('v_mov_b32 v%d, 0' % (AF + 6)); k('v_mov_b32 v%d, 0' % (AF + 7))
    else:
        for sg in range(2):
            for i in range(4): k('v_cvt_pk_bf16_f32 v%d, v%d, v%d' % (AF + 4 * sg + i, S[sg] + 2 * i, S[sg] + 2 * i + 1))
        k('v_cvt_pk_bf16_f32 v%d, v%d, v%d' % (AF + 8, S[0] + 8, S[1] + 8))
        for i in range(1, 4): k('v_mov_b32 v%d, 0' % (AF + 8 + i))

def phq_loads(k, br):
    t = VT + 2
    BQ = 100
    for i in range(4):
        if br == 0:
            k('s_add_u32 s40, s35, %d' % i); k('s_lshl_b32 s40, s40, 3'); k('s_add_u32 s40, s40, s36')
            k('s_mul_i32 s40, s40, 5'); k('s_add_u32 s40, s40, s37')
            k('s_lshl_b32 s40, s40, 10'); k('s_add_u32 s40, s40, %d' % PHQA_OFF)
            for kap in range(2):
                k('buffer_load_dwordx4 %s, v%d, s[8:11], s40 offen offset:%d' % (r4(BQ + i * 12 + 4 * kap), VT, kap * 1024))
        else:
            k('s_add_u32 s40, s35, %d' % i); k('s_lshl_b32 s40, s40, 5'); k('s_add_u32 s40, s40, s32')
            k('s_lshl_b32 s41, s40, 11'); k('s_add_u32 s41, s41, %d' % PHQB_OFF)
            k('s_lshl_b32 s42, s40, 8'); k('s_add_u32 s42, s42, %d' % PHQB2_OFF)
            for sg in range(2):
                k('buffer_load_dwordx4 %s, v%d, s[8:11], s41 offen offset:%d' % (r4(BQ + i * 12 + 4 * sg), VT, sg * 1024))
            k('buffer_load_dword v%d, v%d, s[8:11], s42 offen' % (BQ + i * 12 + 8, t + 6))
            for z in range(1, 4): k('v_mov_b32 v%d, 0' % (BQ + i * 12 + 8 + z))

def ostage(k, br, AF):
    t = VT + 2
    nk = 2 if br == 0 else 3
    BQ = 100
    D = 150
    P = 170
    for i in range(4):
        for kap in range(nk):
            k('v_mfma_f32_32x32x16_bf16 %s, %s, %s, %s' % (r16(D), r4(AF + 4 * kap), r4(BQ + i * 12 + 4 * kap), '0' if kap == 0 else r16(D)))
        k('v_cvt_pk_bf16_f32 v%d, v%d, v%d' % (t, D + 10, D + 10))
        k('v_lshlrev_b32 v%d, 16, v%d' % (t, t))
        k('v_add_f32 v%d, 0x358637bd, v%d' % (t, t))
        k('v_cvt_pk_bf16_f32 v%d, v%d, v%d' % (t, t, t))
        k('v_lshlrev_b32 v%d, 16, v%d' % (t, t))
        k('v_rcp_f32 v%d, v%d' % (t, t))
        for p in range(5): k('v_cvt_pk_bf16_f32 v%d, v%d, v%d' % (P + p, D + 2 * p, D + 2 * p + 1))
        for p in range(5):
            k('v_lshlrev_b32 v%d, 16, v%d' % (D + 2 * p, P + p))
            k('v_and_b32 v%d, 0xffff0000, v%d' % (D + 2 * p + 1, P + p))
        for r in range(10): k('v_mul_f32 v%d, v%d, v%d' % (D + r, D + r, t))
        for p in range(5): k('v_cvt_pk_bf16_f32 v%d, v%d, v%d' % (P + p, D + 2 * p, D + 2 * p + 1))
        k('s_add_u32 s40, s38, %d' % (i * 2048))
        k('s_add_u32 s41, s39, %d' % (i * 2048))
        k('buffer_store_dwordx4 %s, v%d, s[8:11], s40 offen' % (r4(P), t + 4))
        k('buffer_store_dword v%d, v%d, s[8:11], s41 offen' % (P + 4, t + 5))

def gen_k2a():
    k = Kernel('k2a_kernel')
    k('s_cmp_ge_u32 s2, 256')
    k('s_cbranch_scc1 k2a_end')
    k('s_load_dwordx2 s[4:5], s[0:1], 80')
    k('v_lshrrev_b32 v%d, 6, v0' % VT)
    k('v_and_b32 v%d, 63, v0' % VL)
    k('v_readfirstlane_b32 s24, v%d' % VT)
    k('s_waitcnt lgkmcnt(0)')
    srd(k, 8, 's4', 's5', 0x10000000)
    k('s_and_b32 s30, s2, 63')
    k('s_lshr_b32 s31, s2, 6')
    k('s_and_b32 s32, s30, 31')
    k('s_lshr_b32 s29, s30, 5')
    k('s_and_b32 s37, s32, 3')
    k('s_lshr_b32 s36, s32, 2')
    k('s_lshl_b32 s34, s37, 1')
    k('s_lshl_b32 s35, s31, 4'); k('s_lshl_b32 s40, s24, 2'); k('s_add_u32 s35, s35, s40')
    k('s_mul_i32 s40, s29, 18'); k('s_lshr_b32 s41, s32, 1'); k('s_add_u32 s40, s40, s41')
    k('s_lshl_b32 s40, s40, 7'); k('s_lshl_b32 s41, s35, 1'); k('s_add_u32 s40, s40, s41'); k('s_lshl_b32 s40, s40, 10')
    k('s_and_b32 s41, s32, 1'); k('s_lshl_b32 s41, s41, 9'); k('s_add_u32 s40, s40, s41'); k('s_add_u32 s38, s40, %d' % O_OFF)
    k('s_mul_i32 s40, s29, 18'); k('s_lshr_b32 s41, s32, 4'); k('s_add_u32 s40, s40, s41'); k('s_add_u32 s40, s40, 16')
    k('s_lshl_b32 s40, s40, 7'); k('s_lshl_b32 s41, s35, 1'); k('s_add_u32 s40, s40, s41'); k('s_lshl_b32 s40, s40, 10')
    k('s_and_b32 s41, s32, 15'); k('s_lshr_b32 s41, s41, 2'); k('s_lshl_b32 s41, s41, 8'); k('s_add_u32 s40, s40, s41')
    k('s_and_b32 s41, s32, 3'); k('s_lshl_b32 s41, s41, 2'); k('s_add_u32 s40, s40, s41'); k('s_add_u32 s39, s40, %d' % O_OFF)
    t = VT + 2
    k('v_bfe_u32 v%d, v%d, 4, 1' % (t, VL)); k('v_lshlrev_b32 v%d, 10, v%d' % (t, t))
    k('v_and_b32 v%d, 15, v%d' % (t + 1, VL)); k('v_lshl_add_u32 v%d, v%d, 4, v%d' % (t, t + 1, t))
    k('v_lshrrev_b32 v%d, 5, v%d' % (t + 1, VL))
    k('v_lshl_add_u32 v%d, v%d, 8, v%d' % (t + 4, t + 1, t))
    k('v_mov_b32 v%d, 0x7fff0000' % (t + 2))
    k('v_cmp_eq_u32 vcc, 0, v%d' % (t + 1))
    k('v_cndmask_b32 v%d, v%d, v%d, vcc' % (t + 5, t + 2, t))
    k('v_lshlrev_b32 v%d, 2, v%d' % (t + 6, VL))
    k('s_cmp_eq_u32 s29, 0')
    k('s_cbranch_scc0 k2a_b')
    for br in range(2):
        if br == 1: k.label('k2a_b')
        if br == 0: k('s_mov_b32 s33, s32')
        else:
            k('s_lshl_b32 s33, s32, 1'); k('s_add_u32 s33, s33, 32')
        S = reduce_partials(k, br, lambda: phq_loads(k, br))
        AF = 184
        make_afrags(k, br, S, AF)
        ostage(k, br, AF)
        k('s_endpgm')
    k.label('k2a_end')
    k('s_endpgm')
    return k

def side_jobs(k):
    t = VT + 2
    k('s_load_dwordx2 s[12:13], s[0:1], 16')
    k('s_load_dwordx2 s[14:15], s[0:1], 48')
    k('s_load_dwordx2 s[16:17], s[0:1], 0')
    k('s_load_dwordx2 s[18:19], s[0:1], 56')
    k('s_waitcnt lgkmcnt(0)')
    k('v_and_b32 v%d, 15, v%d' % (t, VL))
    k('v_lshrrev_b32 v%d, 4, v%d' % (t + 1, VL))
    for it in range(2):
        k('s_lshl_b32 s40, s2, 2'); k('s_add_u32 s40, s40, s24'); k('s_add_u32 s40, s40, %d' % (1024 * it))
        if it == 1:
            k('s_cmp_ge_u32 s40, 1440')
            k('s_cbranch_scc1 k2a_gate')
        k('s_mul_i32 s41, s40, 52429'); k('s_lshr_b32 s41, s41, 18')
        k('s_mul_i32 s42, s41, 5'); k('s_sub_u32 s42, s40, s42')
        k('s_mul_i32 s43, s41, 58255'); k('s_lshr_b32 s43, s43, 20')
        k('s_mul_i32 s44, s43, 18'); k('s_sub_u32 s44, s41, s44')
        k('s_and_b32 s45, s43, 7'); k('s_lshr_b32 s46, s43, 3')
        k('s_cmp_eq_u32 s46, 0')
        k('s_cselect_b32 s20, s12, s14'); k('s_cselect_b32 s21, s13, s15')
        k('s_and_b32 s21, s21, 0xffff'); k('s_mov_b32 s22, %d' % (576 * 1152)); k('s_mov_b32 s23, 0x20000')
        k('s_mul_i32 s47, s45, 72'); k('s_lshl_b32 s48, s42, 4'); k('s_add_u32 s47, s47, s48')
        k('v_add_u32 v%d, s48, v%d' % (t + 2, t))
        k('v_add_u32 v%d, s47, v%d' % (t + 3, t))
        k('v_lshlrev_b32 v%d, 1, v%d' % (t + 3, t + 3))
        k('v_mov_b32 v%d, 0x7fff0000' % (t + 4))
        k('v_cmp_gt_u32 vcc, 72, v%d' % (t + 2))
        k('v_cndmask_b32 v%d, v%d, v%d, vcc' % (t + 3, t + 4, t + 3))
        k('s_cmp_lt_u32 s44, 16')
        k('s_cbranch_scc0 k2a_wx%d' % it)
        k('v_lshrrev_b32 v%d, 1, v%d' % (t + 5, t + 1)); k('s_lshl_b32 s48, s44, 1'); k('v_add_u32 v%d, s48, v%d' % (t + 5, t + 5))
        k('v_mul_u32_u24 v%d, 18, v%d' % (t + 5, t + 5))
        k('v_and_b32 v%d, 1, v%d' % (t + 6, t + 1)); k('v_lshl_add_u32 v%d, v%d, 2, v%d' % (t + 5, t + 6, t + 5))
        k('v_mul_u32_u24 v%d, 1152, v%d' % (t + 5, t + 5)); k('v_add_u32 v%d, v%d, v%d' % (t + 5, t + 5, t + 3))
        offs = [(j if j < 4 else j + 4) * 1152 for j in range(8)]
        k('s_branch k2a_wl%d' % it)
        k.label('k2a_wx%d' % it)
        k('s_sub_u32 s48, s44, 16'); k('s_lshl_b32 s48, s48, 4')
        k('v_lshlrev_b32 v%d, 2, v%d' % (t + 5, t + 1)); k('v_add_u32 v%d, s48, v%d' % (t + 5, t + 5))
        k('v_mul_u32_u24 v%d, 18, v%d' % (t + 5, t + 5)); k('v_add_u32 v%d, 16, v%d' % (t + 5, t + 5))
        k('v_mul_u32_u24 v%d, 1152, v%d' % (t + 5, t + 5)); k('v_add_u32 v%d, v%d, v%d' % (t + 5, t + 5, t + 3))
        k('s_mov_b32 s49, 1')
        k('s_branch k2a_wl2%d' % it)
        k.label('k2a_wl%d' % it)
        k('s_mov_b32 s49, 0')
        k.label('k2a_wl2%d' % it)
        for j in range(8):
            moff = (j if j < 4 else j + 4) * 1152; xoff = (j // 2) * 18 * 1152 + (j % 2) * 1152
            k('s_mul_i32 s50, s49, %d' % (xoff - moff))
            k('s_add_u32 s50, s50, %d' % moff)
            k('buffer_load_ushort v%d, v%d, s[20:23], s50 offen' % (t + 8 + j, t + 5))
        for p in range(4):
            k('v_lshl_or_b32 v%d, v%d, 16, v%d' % (t + 16 + p, t + 8 + 2 * p + 1, t + 8 + 2 * p))
        k('s_lshl_b32 s40, s40, 10'); k('s_add_u32 s40, s40, %d' % WOT_OFF)
        k('v_lshlrev_b32 v%d, 4, v%d' % (t + 7, VL))
        k('buffer_store_dwordx4 %s, v%d, s[8:11], s40 offen' % (r4(t + 16), t + 7))
    k.label('k2a_gate')
    srd(k, 20, 's16', 's17', 2048 * 1152)
    srd(k, 52, 's18', 's19', 1152)
    k('v_lshlrev_b32 v%d, 1, v%d' % (t, VL))
    for i in range(9): k('buffer_load_ushort v%d, v%d, s[52:55], 0 offen offset:%d' % (t + 8 + i, t, i * 128))
    k('s_lshl_b32 s40, s2, 3'); k('s_lshl_b32 s41, s24, 1'); k('s_add_u32 s40, s40, s41')
    for tk in range(2):
        k('s_add_u32 s41, s40, %d' % tk); k('s_mul_i32 s42, s41, 1152')
        for i in range(9): k('buffer_load_ushort v%d, v%d, s[20:23], s42 offen offset:%d' % (t + 20 + i, t, i * 128))
        k('v_mov_b32 v%d, 0' % (t + 1))
        for i in range(9):
            k('v_lshlrev_b32 v%d, 16, v%d' % (t + 2, t + 8 + i)); k('v_lshlrev_b32 v%d, 16, v%d' % (t + 3, t + 20 + i))
            k('v_mul_f32 v%d, v%d, v%d' % (t + 2, t + 2, t + 3))
            k('v_cvt_pk_bf16_f32 v%d, v%d, v%d' % (t + 2, t + 2, t + 2))
            k('v_lshlrev_b32 v%d, 16, v%d' % (t + 2, t + 2))
            k('v_add_f32 v%d, v%d, v%d' % (t + 1, t + 1, t + 2))
        k('v_lshlrev_b32 v%d, 2, v%d' % (t + 2, VL))
        for mask in (1, 2, 4, 8, 16, 32):
            k('v_xor_b32 v%d, %d, v%d' % (t + 3, mask * 4, t + 2))
            k('ds_bpermute_b32 v%d, v%d, v%d' % (t + 4, t + 3, t + 1))
            k('v_add_f32 v%d, v%d, v%d' % (t + 1, t + 1, t + 4))
        k('v_cvt_pk_bf16_f32 v%d, v%d, v%d' % (t + 1, t + 1, t + 1)); k('v_lshlrev_b32 v%d, 16, v%d' % (t + 1, t + 1))
        k('v_mul_f32 v%d, 0xbfb8aa3b, v%d' % (t + 1, t + 1))
        k('v_exp_f32 v%d, v%d' % (t + 1, t + 1))
        k('v_add_f32 v%d, 1.0, v%d' % (t + 1, t + 1))
        k('v_rcp_f32 v%d, v%d' % (t + 1, t + 1))
        k('v_cvt_pk_bf16_f32 v%d, v%d, v%d' % (t + 1, t + 1, t + 1)); k('v_lshlrev_b32 v%d, 16, v%d' % (t + 1, t + 1))
        k('s_lshl_b32 s42, s41, 2'); k('s_add_u32 s42, s42, %d' % G_OFF)
        k('v_mov_b32 v%d, 0' % (t + 2))
        k('v_cmp_eq_u32 vcc, 0, v%d' % VL)
        k('v_mov_b32 v%d, 0x7fff0000' % (t + 3))
        k('v_cndmask_b32 v%d, v%d, v%d, vcc' % (t + 2, t + 3, t + 2))
        k('buffer_store_dword v%d, v%d, s[8:11], s42 offen' % (t + 1, t + 2))

if __name__ == '__main__':
    k = gen_k2a()
    open('k2a_test.s', 'w').write(file_text([(k, 240, 60)], [('k2a_kernel', 256, 256, 24576)]))
    print(k.stats)
```

```python
import sys
from common import *
from k1e import gen_k1_full, SLOT
from k2a import gen_k2a
from k2b import gen_k2b
hdr = open('gated_mix__linear_attn_block__linear_kernel_hedgehog__prompt.s.ref').read().split('; @launch')[0]
import os, k1e, k2a as m2a
import asmgen
MOD1 = os.environ.get('MOD1', ''); MOD2 = os.environ.get('MOD2', '')
_K = asmgen.Kernel
class KM(_K):
    def __init__(self, name):
        super().__init__(name)
        self.store_mod = {'k1_kernel': MOD1, 'k2a_kernel': MOD2}.get(name, '')
k1e.Kernel = KM; m2a.Kernel = KM
k1 = gen_k1_full(); k2a = gen_k2a(); k2b = gen_k2b()
txt = file_text([(k1, 256, 56), (k2a, 240, 60), (k2b, 208, 40)],
                [('k1_kernel', 256, 512, 3 * SLOT), ('k2a_kernel', 256, 256, 24576), ('k2b_kernel', 256, 256, 81920)], hdr)
out = sys.argv[1] if len(sys.argv) > 1 else 'full.s'
open(out, 'w').write(txt)
print(len(txt), 'bytes')
```

```python
from common import *
from layout import *

def gen_k2b():
    k = Kernel('k2b_kernel')
    k.agprs = 80
    ACC = 0
    RING = 0
    ND = 6
    VA = 220
    VT = 224
    def acc(mt, tt): return (mt * 4 + tt) * 4
    def a4(b): return 'a[%d:%d]' % (b, b + 3)
    def ra(slot, mt): return RING + slot * 36 + mt * 4
    def rb(slot, tt): return RING + slot * 36 + 20 + tt * 4
    def r4(b): return 'v[%d:%d]' % (b, b + 3)
    k('s_cmp_ge_u32 s2, 256')
    k('s_cbranch_scc1 k2b_end')
    k('s_load_dwordx2 s[4:5], s[0:1], 80')
    k('s_load_dwordx2 s[6:7], s[0:1], 64')
    k('v_lshrrev_b32 v%d, 6, v0' % VT)
    k('v_and_b32 v%d, 63, v0' % (VT + 1))
    k('v_readfirstlane_b32 s16, v%d' % VT)
    k('s_waitcnt lgkmcnt(0)')
    srd(k, 8, 's4', 's5', 0x10000000)
    srd(k, 12, 's6', 's7', 2048 * 576 * 2)
    k('s_and_b32 s17, s2, 31')
    k('s_lshr_b32 s18, s2, 5')
    k('s_lshr_b32 s19, s16, 1')
    k('s_and_b32 s20, s16, 1')
    k('s_lshl_b32 s21, s19, 3')
    k('s_add_u32 s21, s21, s18')
    k('s_mul_i32 s21, s21, 18')
    k('s_mul_i32 s22, s20, 9')
    k('s_add_u32 s21, s21, s22')
    k('s_mul_i32 s21, s21, 5120')
    k('s_add_u32 s21, s21, %d' % WOT_OFF)
    k('s_mul_i32 s23, s19, 18')
    k('s_mul_i32 s22, s20, 9')
    k('s_add_u32 s23, s23, s22')
    k('s_lshl_b32 s23, s23, 7')
    k('s_lshl_b32 s22, s17, 2')
    k('s_add_u32 s23, s23, s22')
    k('s_lshl_b32 s23, s23, 10')
    k('s_add_u32 s23, s23, %d' % O_OFF)
    k('v_lshlrev_b32 v%d, 4, v%d' % (VA, VT + 1))
    k('v_and_b32 v%d, 15, v%d' % (VT + 2, VT + 1))
    k('v_lshrrev_b32 v%d, 4, v%d' % (VT + 3, VT + 1))


    def issue(step):
        slot = step % ND
        for mt in range(5):
            if mt < 4:
                k('buffer_load_dwordx4 %s, v%d, s[8:11], s21 offen offset:%d' % (r4(ra(slot, mt)), VA, mt * 1024))
            else:
                k('buffer_load_dwordx4 %s, v%d, s[8:11], s24 offen' % (r4(ra(slot, mt)), VA))
        for tt in range(4):
            k('buffer_load_dwordx4 %s, v%d, s[8:11], s23 offen offset:%d' % (r4(rb(slot, tt)), VA, tt * 1024))
        k('s_add_u32 s23, s23, 131072')
        k('s_add_u32 s21, s21, 5120')
        k('s_add_u32 s24, s21, 4096')
    k('s_add_u32 s24, s21, 4096')
    for st in range(ND): issue(st)
    for st in range(9):
        slot = st % ND
        for mt in range(5):
            for tt in range(4):
                k('v_mfma_f32_16x16x32_bf16 %s, %s, %s, %s' % (a4(acc(mt, tt)), r4(ra(slot, mt)), r4(rb(slot, tt)), '0' if st == 0 else a4(acc(mt, tt))))
        if st + ND < 9: issue(st + ND)
    k('s_lshl_b32 s25, s17, 6')
    k('s_lshl_b32 s26, s16, 4')
    k('s_add_u32 s25, s25, s26')
    k('v_add_u32 v%d, s25, v%d' % (VT + 4, VT + 2))
    k('v_lshlrev_b32 v%d, 2, v%d' % (VT + 5, VT + 4))
    k('s_mov_b32 s27, %d' % G_OFF)
    k('buffer_load_dword v%d, v%d, s[8:11], s27 offen' % (VT + 6, VT + 5))
    k('s_mul_i32 s28, s16, 20480')
    k('v_lshlrev_b32 v%d, 4, v%d' % (VT + 7, VT + 1))
    k('v_add_u32 v%d, s28, v%d' % (VT + 7, VT + 7))
    for tt in range(4):
        for mt in range(5):
            k('ds_write_b128 v%d, %s offset:%d' % (VT + 7, a4(acc(mt, tt)), (tt * 5 + mt) * 1024))
    k('s_waitcnt lgkmcnt(0)')
    k('s_barrier')
    k('s_mul_i32 s28, s16, 5120')
    k('v_lshlrev_b32 v%d, 4, v%d' % (VT + 7, VT + 1))
    k('v_add_u32 v%d, s28, v%d' % (VT + 7, VT + 7))
    R = 100
    k('v_add_u32 v%d, 40960, v%d' % (VT + 12, VT + 7))
    for src in range(4):
        for mt in range(5):
            k('ds_read_b128 %s, v%d offset:%d' % (r4(R + (src * 5 + mt) * 4), (VT + 7) if src < 2 else (VT + 12), (src % 2) * 20480 + mt * 1024))
    G, OMG = VT + 6, VT + 8
    k('v_sub_f32 v%d, 1.0, v%d' % (OMG, G))
    k('v_cvt_pk_bf16_f32 v%d, v%d, v%d' % (OMG, OMG, OMG))
    k('v_lshlrev_b32 v%d, 16, v%d' % (OMG, OMG))
    k('v_mul_u32_u24 v%d, 1152, v%d' % (VT + 9, VT + 4))
    k('s_mul_i32 s29, s18, 144')
    k('v_lshl_add_u32 v%d, v%d, 3, v%d' % (VT + 9, VT + 3, VT + 9))
    k('v_add_u32 v%d, s29, v%d' % (VT + 9, VT + 9))
    k('v_cmp_gt_u32 vcc, 2, v%d' % (VT + 3))
    k('v_mov_b32 v%d, 0x7ffffff0' % (VT + 11))
    k('v_cndmask_b32 v%d, v%d, v%d, vcc' % (VT + 10, VT + 11, VT + 9))
    for mt in range(5):
        a0 = R + (0 * 5 + mt) * 4; a1 = R + (1 * 5 + mt) * 4; b0 = R + (2 * 5 + mt) * 4; b1 = R + (3 * 5 + mt) * 4
        T = ACC + mt * 16
        for i in range(4):
            k('v_add_f32 v%d, v%d, v%d' % (a0 + i, a0 + i, a1 + i))
            k('v_add_f32 v%d, v%d, v%d' % (b0 + i, b0 + i, b1 + i))
        for (src, dst) in ((a0, T), (b0, T + 4)):
            k('v_cvt_pk_bf16_f32 v%d, v%d, v%d' % (dst, src, src + 1))
            k('v_cvt_pk_bf16_f32 v%d, v%d, v%d' % (dst + 1, src + 2, src + 3))
        for (pk, dst, mul) in ((T, a0, G), (T + 4, b0, OMG)):
            for h in range(2):
                k('v_lshlrev_b32 v%d, 16, v%d' % (dst + 2 * h, pk + h))
                k('v_and_b32 v%d, 0xffff0000, v%d' % (dst + 2 * h + 1, pk + h))
            for i in range(4):
                k('v_mul_f32 v%d, v%d, v%d' % (dst + i, mul, dst + i))
        for (src, dst) in ((a0, T), (b0, T + 4)):
            k('v_cvt_pk_bf16_f32 v%d, v%d, v%d' % (dst, src, src + 1))
            k('v_cvt_pk_bf16_f32 v%d, v%d, v%d' % (dst + 1, src + 2, src + 3))
        for (pk, dst) in ((T, a0), (T + 4, b0)):
            for h in range(2):
                k('v_lshlrev_b32 v%d, 16, v%d' % (dst + 2 * h, pk + h))
                k('v_and_b32 v%d, 0xffff0000, v%d' % (dst + 2 * h + 1, pk + h))
        for i in range(4):
            k('v_add_f32 v%d, v%d, v%d' % (a0 + i, a0 + i, b0 + i))
        k('v_cvt_pk_bf16_f32 v%d, v%d, v%d' % (T + 8, a0, a0 + 1))
        k('v_cvt_pk_bf16_f32 v%d, v%d, v%d' % (T + 9, a0 + 2, a0 + 3))
        k('buffer_store_dwordx2 v[%d:%d], v%d, s[12:15], 0 offen offset:%d' % (T + 8, T + 9, (VT + 10) if mt == 4 else (VT + 9), mt * 32))
    k.label('k2b_end')
    k('s_endpgm')
    return k

if __name__ == '__main__':
    k = gen_k2b()
    open('k2b_test.s', 'w').write(file_text([(k, 208, 40)], [('k2b_kernel', 256, 256, 81920)]))
    print(k.stats)
```

```python
import sys
from common import *
from k1e import gen_k1_full, SLOT
from k2a import gen_k2a
from k2b import gen_k2b
hdr = open('gated_mix__linear_attn_block__linear_kernel_hedgehog__prompt.s.ref').read().split('; @launch')[0]
import os, k1e, k2a as m2a
import asmgen
MOD1 = os.environ.get('MOD1', ''); MOD2 = os.environ.get('MOD2', '')
_K = asmgen.Kernel
class KM(_K):
    def __init__(self, name):
        super().__init__(name)
        self.store_mod = {'k1_kernel': MOD1, 'k2a_kernel': MOD2, 'k2b_kernel': os.environ.get('MOD3','')}.get(name, '')
import k2b as m2b
k1e.Kernel = KM; m2a.Kernel = KM; m2b.Kernel = KM
k1 = gen_k1_full(); k2a = gen_k2a(); k2b = gen_k2b()
txt = file_text([(k1, 256, 56), (k2a, 240, 60), (k2b, 240, 40)],
                [('k1_kernel', 256, 512, 3 * SLOT), ('k2a_kernel', 256, 256, 24576), ('k2b_kernel', 256, 256, 81920)], hdr)
out = sys.argv[1] if len(sys.argv) > 1 else 'full.s'
open(out, 'w').write(txt)
print(len(txt), 'bytes')
```
